```python
import torch

def _softmax(x, axis=-1):
    return torch.softmax(x, dim=axis)
def _gelu(x):
    return torch.nn.functional.gelu(x, approximate="tanh")
def _silu(x):
    return torch.nn.functional.silu(x)
def _sigmoid(x):
    return torch.sigmoid(x)
def _layernorm(x, axis=-1, eps=1e-5):
    m = x.mean(dim=axis, keepdim=True)
    v = x.var(dim=axis, keepdim=True, unbiased=False)
    return (x - m) / torch.sqrt(v + eps)
def _scatter_add(tgt, idx, src, axis=0):
    return tgt.clone().index_add_(axis, idx, src)
def _segment_sum(src, seg, n):
    out = torch.zeros((n,) + src.shape[1:], dtype=src.dtype)
    return out.index_add_(0, seg, src)
def _pad(x, pw):
    flat = tuple(v for pair in reversed(pw) for v in pair)
    return torch.nn.functional.pad(x, flat)

kernel_name = 'parallel_sum__sliding_local_dilated__glu_gated_swiglu__prompt'

def setup_inputs():

    _w = (lambda a: (lambda t: t.to(torch.bfloat16) if t.is_floating_point() else t)(torch.as_tensor(a)))
    def _A_setup():
        B, S, D = 1, 2048, 640
        return {
            "x": _w((lambda *s: torch.randn(*s, dtype=torch.bfloat16) * 0.05)(B, S, D)),
            "wqkv": _w((lambda *s: torch.randn(*s, dtype=torch.bfloat16) * 0.05)(D, 3 * D)),
            "wo": _w((lambda *s: torch.randn(*s, dtype=torch.bfloat16) * 0.05)(D, D)),
        }
    _A_in = _A_setup()

    def _B_setup():
        B, S, D, F = 1, 2048, 640, 1536
        return {
            "x": _w((lambda *s: torch.randn(*s, dtype=torch.bfloat16) * 0.05)(B, S, D)),
            "w1": _w((lambda *s: torch.randn(*s, dtype=torch.bfloat16) * 0.8)(D, F) * (2.0 / D) ** 0.5),
            "w3": _w((lambda *s: torch.randn(*s, dtype=torch.bfloat16) * 0.8)(D, F) * (2.0 / D) ** 0.5),
            "w2": _w((lambda *s: torch.randn(*s, dtype=torch.bfloat16) * 0.8)(F, D) * (2.0 / F) ** 0.5),
        }
    _B_in = _B_setup()

    return {
        "A_x": _A_in["x"],
        "A_wqkv": _A_in["wqkv"],
        "A_wo": _A_in["wo"],
        "B_x": _B_in["x"],
        "B_w1": _B_in["w1"],
        "B_w3": _B_in["w3"],
        "B_w2": _B_in["w2"],
    }

def reference(A_x, A_wqkv, A_wo, B_x, B_w1, B_w3, B_w2):
    def _A_ref(x, wqkv, wo):
        B, S, D = x.shape
        H = 32; Dh = D // H
        W, dil = 8, 2
        qkv = (lambda x, *d: x.permute(*d))((x @ wqkv).reshape(B, S, 3, H, Dh), 2, 0, 3, 1, 4)
        q, k, v = qkv[0], qkv[1], qkv[2]
        scale = Dh ** -0.5
        pos = torch.arange(S)
        off = torch.arange(W) * dil
        idx = pos[:, None] - off[None, :]
        mask = idx >= 0
        idx_c = torch.where(mask, idx, 0).reshape(-1)
        kg = k[:, :, idx_c, :].reshape(B, H, S, W, Dh)
        vg = v[:, :, idx_c, :].reshape(B, H, S, W, Dh)
        logits = torch.einsum("bhsd,bhswd->bhsw", q, kg) * scale
        logits = torch.where(mask[None, None, :, :], logits, -1e9)
        attn = _softmax(logits, axis=-1)
        o = torch.einsum("bhsw,bhswd->bhsd", attn, vg)
        return (lambda x, *d: x.permute(*d))(o, 0, 2, 1, 3).reshape(B, S, D) @ wo

    def _B_ref(x, w1, w3, w2):
        gate = torch.einsum("bsd,df->bsf", x, w1)
        up = torch.einsum("bsd,df->bsf", x, w3)
        h = _silu(gate) * up
        out = torch.einsum("bsf,fd->bsd", h, w2)
        return out

    x = A_x
    xn = _layernorm(x, axis=-1)
    return x + _A_ref(xn, A_wqkv, A_wo) + _B_ref(xn, B_w1, B_w3, B_w2)
```

```python
import sys
OUT = []
def e(s): OUT.append("    " + s)
def lab(s): OUT.append(s + ":")
def c(s): OUT.append("    ; " + s)

XN_OFF  = 0x0
QKV_OFF = 0x300000
OH_OFF  = 0xB00000
XN_SZ, QKV_SZ, OH_SZ = 2048*1280, 2048*3840, 2048*4352

def srd(d, lo, hi, size, add=0):
    if add:
        e(f"s_add_u32 s{d}, s{lo}, {add:#x}")
        e(f"s_addc_u32 s{d+1}, s{hi}, 0")
    else:
        e(f"s_mov_b32 s{d}, s{lo}")
        e(f"s_mov_b32 s{d+1}, s{hi}")
    e(f"s_and_b32 s{d+1}, s{d+1}, 0xffff")
    e(f"s_mov_b32 s{d+2}, {size:#x}")
    e(f"s_mov_b32 s{d+3}, 0x00020000")

def kstart(name):
    OUT.append(f".globl {name}\n.p2align 8\n.type {name},@function\n{name}:")

DESCS = []
def kdesc(name, vgpr, sgpr=96):
    acc = ((vgpr + 3)//4)*4
    DESCS.append(f""".p2align 6
.amdhsa_kernel {name}
  .amdhsa_next_free_vgpr {vgpr}
  .amdhsa_next_free_sgpr {sgpr}
  .amdhsa_accum_offset {acc}
  .amdhsa_group_segment_fixed_size 0
  .amdhsa_kernarg_size 80
  .amdhsa_user_sgpr_count 2
  .amdhsa_user_sgpr_kernarg_segment_ptr 1
  .amdhsa_system_sgpr_workgroup_id_x 1
.end_amdhsa_kernel""")

def bf16r(dst, src):
    e(f"v_cvt_pk_bf16_f32 {dst}, {src}, {src}")
    e(f"v_lshlrev_b32 {dst}, 16, {dst}")

def wave_sum(v, tmp, sdst):
    for m in (1,2,4,8,16):
        e(f"ds_swizzle_b32 {tmp}, {v} offset:{(m<<10)|0x1f:#x}")
        e("s_waitcnt lgkmcnt(0)")
        e(f"v_add_f32 {v}, {v}, {tmp}")
    e("s_nop 1")
    e(f"v_readlane_b32 {sdst}, {v}, 32")
    e("s_nop 3")
    e(f"v_add_f32 {v}, {sdst}, {v}")
    e("s_nop 1")
    e(f"v_readlane_b32 {sdst}, {v}, 0")
    e("s_nop 3")

def gen_ln():
    kstart("ln_kernel")
    e("s_cmp_ge_u32 s2, 512"); e("s_cbranch_scc1 LN_done")
    e("s_load_dwordx2 s[4:5], s[0:1], 0")
    e("s_load_dwordx2 s[6:7], s[0:1], 72")
    e("v_lshrrev_b32 v1, 6, v0")
    e("v_and_b32 v2, 63, v0")
    e("s_lshl_b32 s3, s2, 2")
    e("v_add_u32 v1, s3, v1")
    e("v_mul_u32_u24 v1, 1280, v1")
    e("v_lshl_add_u32 v3, v2, 4, v1")
    e("v_lshl_add_u32 v4, v2, 2, v1")
    e("v_add_u32 v4, 1024, v4")
    e("s_waitcnt lgkmcnt(0)")
    srd(8, 4, 5, XN_SZ)
    srd(12, 6, 7, XN_SZ, XN_OFF)
    e("buffer_load_dwordx4 v[8:11], v3, s[8:11], 0 offen")
    e("buffer_load_dword v12, v4, s[8:11], 0 offen")
    e("s_waitcnt vmcnt(0)")
    for i in range(5):
        e(f"v_lshlrev_b32 v{16+2*i}, 16, v{8+i}")
        e(f"v_and_b32 v{17+2*i}, 0xffff0000, v{8+i}")
    e("v_add_f32 v30, v16, v17")
    for i in range(2,10): e(f"v_add_f32 v30, v30, v{16+i}")
    wave_sum("v30", "v31", "s20")
    e("v_mov_b32 v32, 0x3acccccd")
    e("v_mul_f32 v33, s20, v32")
    e("v_sub_f32 v34, v16, v33"); e("v_mul_f32 v30, v34, v34")
    for i in range(1,10):
        e(f"v_sub_f32 v34, v{16+i}, v33"); e("v_fmac_f32 v30, v34, v34")
    wave_sum("v30", "v31", "s20")
    e("v_mul_f32 v35, s20, v32")
    bf16r("v33", "v33"); bf16r("v35", "v35")
    e("v_add_f32 v35, 0x3727c5ac, v35")
    bf16r("v35", "v35")
    e("v_sqrt_f32 v35, v35"); e("s_nop 0")
    bf16r("v35", "v35")
    e("v_rcp_f32 v36, v35"); e("s_nop 0")
    for i in range(10):
        e(f"v_sub_f32 v{16+i}, v{16+i}, v33")
        bf16r(f"v{16+i}", f"v{16+i}")
        e(f"v_mul_f32 v37, v{16+i}, v36")
        e(f"v_fma_f32 v38, -v37, v35, v{16+i}")
        e(f"v_fma_f32 v{16+i}, v38, v36, v37")
    for i in range(5):
        e(f"v_cvt_pk_bf16_f32 v{8+i}, v{16+2*i}, v{17+2*i}")
    e("buffer_store_dwordx4 v[8:11], v3, s[12:15], 0 offen")
    e("buffer_store_dword v12, v4, s[12:15], 0 offen")
    lab("LN_done"); e("s_endpgm")
    kdesc("ln_kernel", 40)

def gen_g1():
    kstart("g1_kernel")
    STG = 57344
    e("s_cmp_ge_u32 s2, 208"); e("s_cbranch_scc1 G1_done")
    e("s_load_dwordx2 s[4:5], s[0:1], 8")
    e("s_load_dwordx2 s[6:7], s[0:1], 32")
    e("s_load_dwordx2 s[16:17], s[0:1], 40")
    e("s_load_dwordx2 s[18:19], s[0:1], 72")
    e("s_and_b32 s3, s2, 7"); e("s_mul_i32 s3, s3, 26"); e("s_lshr_b32 s20, s2, 3"); e("s_add_u32 s3, s3, s20")
    e("s_lshr_b32 s20, s3, 3")
    e("s_and_b32 s21, s3, 7")
    e("v_lshrrev_b32 v1, 6, v0")
    e("v_and_b32 v2, 63, v0")
    e("s_nop 0")
    e("v_readfirstlane_b32 s22, v1")
    e("s_waitcnt lgkmcnt(0)")
    srd(8, 18, 19, XN_SZ, XN_OFF)
    e("s_cmp_ge_u32 s22, 4"); e("s_cselect_b32 s23, 1, 0")
    e("s_cmp_lt_u32 s20, 10"); e("s_cbranch_scc1 G1_qkvsetup")
    e("s_sub_u32 s24, s20, 10"); e("s_mul_i32 s24, s24, 192")
    e("s_cmp_eq_u32 s23, 0"); e("s_cselect_b32 s26, s6, s16"); e("s_cselect_b32 s27, s7, s17")
    e("s_mov_b32 s25, 3072")
    srd(12, 26, 27, 640*3072)
    e("s_branch G1_setup2")
    lab("G1_qkvsetup")
    e("s_mul_i32 s24, s20, 384"); e("s_mul_i32 s25, s23, 192"); e("s_add_u32 s24, s24, s25")
    e("s_mov_b32 s25, 3840")
    srd(12, 4, 5, 640*3840)
    lab("G1_setup2")
    e("s_lshl_b32 s28, s21, 8")
    e("v_lshrrev_b32 v10, 3, v2"); e("v_and_b32 v11, 7, v2")
    for i in range(4):
        e(f"v_lshl_add_u32 v12, v1, 5, {8*i}")
        e("v_add_u32 v12, v12, v10")
        e("v_bfe_u32 v13, v12, 1, 3")
        e("v_xor_b32 v13, v13, v11")
        e("v_add_u32 v12, s28, v12")
        e("v_mul_u32_u24 v12, 1280, v12")
        e(f"v_lshl_add_u32 v{4+i}, v13, 4, v12")
    e("v_and_b32 v10, 3, v1")
    e("v_mul_u32_u24 v10, 192, v10"); e("v_add_u32 v10, v10, v2")
    for i in range(3):
        e(f"v_add_u32 v11, {64*i}, v10")
        e("v_mul_u32_u24 v12, 43691, v11"); e("v_lshrrev_b32 v12, 19, v12")
        e("v_mul_u32_u24 v13, 12, v12"); e("v_sub_u32 v13, v11, v13")
        e("v_bfe_u32 v17, v12, 3, 1"); e("v_lshlrev_b32 v17, 1, v17"); e("v_xor_b32 v13, v13, v17")
        e("v_mul_lo_u32 v12, v12, s25")
        e("v_lshl_add_u32 v12, v13, 4, v12")
        e(f"v_add_u32 v{14+i}, s24, v12")
    e("v_and_b32 v10, 15, v2"); e("v_lshrrev_b32 v11, 4, v2")
    e("v_lshrrev_b32 v12, 1, v10"); e("v_xor_b32 v12, v12, v11")
    e("v_and_b32 v13, 3, v1"); e("v_lshlrev_b32 v13, 13, v13")
    e("v_lshl_add_u32 v13, v10, 7, v13")
    e("v_lshl_add_u32 v18, v12, 4, v13")
    e("v_xor_b32 v19, 64, v18")
    e("v_lshrrev_b32 v12, 2, v10"); e("v_and_b32 v13, 3, v10")
    e("v_lshrrev_b32 v17, 2, v1")
    e("v_lshl_add_u32 v26, v11, 3, v12"); e("v_mul_u32_u24 v26, 192, v26")
    e("v_and_b32 v27, 1, v13"); e("v_lshl_add_u32 v26, v27, 3, v26")
    for jb in range(3):
        e("v_mul_u32_u24 v27, 6, v17"); e("v_lshrrev_b32 v28, 1, v13")
        e(f"v_add3_u32 v27, v27, v28, {2*jb}")
        e("v_and_b32 v28, 1, v11"); e("v_lshlrev_b32 v28, 1, v28"); e("v_xor_b32 v27, v27, v28")
        e(f"v_lshl_add_u32 v{20+jb}, v27, 4, v26")
        e(f"v_add_u32 v{23+jb}, {STG}, v{20+jb}")
    ACC = 32
    for i in range(96): e(f"v_mov_b32 v{ACC+i}, 0")
    XF = 128
    WF = 160
    e("s_lshl_b32 s30, s22, 12")
    e("s_mul_i32 s31, s22, 3072"); e("s_add_u32 s31, s31, 32768")
    e("s_mov_b32 s32, 0")
    e("s_mov_b32 s33, 0")
    e("s_lshl_b32 s34, s25, 6")
    def dma(b):
        for i in range(4):
            e(f"s_add_u32 m0, s30, {b*STG + i*1024}"); e("s_nop 0")
            e(f"buffer_load_dwordx4 v{4+i}, s[8:11], s32 offen lds")
        for i in range(3):
            e(f"s_add_u32 m0, s31, {b*STG + i*1024}"); e("s_nop 0")
            e(f"buffer_load_dwordx4 v{14+i}, s[12:15], s33 offen lds")
        e("s_add_u32 s32, s32, 128"); e("s_add_u32 s33, s33, s34")
    dma(0)
    e("s_mov_b32 s35, 0")
    lab("G1_loop")
    for b in range(2):
        e("s_waitcnt vmcnt(0)"); e("s_barrier")
        if b == 0: dma(1)
        else:
            e("s_cmp_eq_u32 s35, 4"); e("s_cbranch_scc1 G1_nodma"); dma(0); lab("G1_nodma")
        for kk in range(2):
            for mb in range(4):
                e(f"ds_read_b128 v[{XF+kk*16+mb*4}:{XF+kk*16+mb*4+3}], v{18+kk} offset:{b*STG+mb*2048}")
            for s in range(2):
                for jb in range(3):
                    for h in range(2):
                        r = WF + kk*24 + (s*3+jb)*4 + h*2
                        e(f"ds_read_b64_tr_b16 v[{r}:{r+1}], v{20+3*b+jb} offset:{32768+s*12288+kk*6144+h*768}")
        for kk in range(2):
            e(f"s_waitcnt lgkmcnt({15 if kk==0 else 0})")
            for nb in range(6):
                for mb in range(4):
                    a = ACC + (nb*4+mb)*4
                    w = WF+kk*24+nb*4; x = XF+kk*16+mb*4
                    e(f"v_mfma_f32_16x16x32_bf16 v[{a}:{a+3}], v[{w}:{w+3}], v[{x}:{x+3}], v[{a}:{a+3}]")
    e("s_add_u32 s35, s35, 1"); e("s_cmp_lt_u32 s35, 5"); e("s_cbranch_scc1 G1_loop")
    e("s_nop 7"); e("s_nop 7")
    e("v_and_b32 v10, 15, v2"); e("v_lshrrev_b32 v11, 4, v2")
    e("v_and_b32 v12, 3, v1"); e("v_lshl_add_u32 v10, v12, 6, v10"); e("v_add_u32 v10, s28, v10")
    e("v_lshrrev_b32 v12, 2, v1"); e("v_mul_u32_u24 v12, 48, v12"); e("v_lshl_add_u32 v11, v11, 2, v12")
    e("s_cmp_lt_u32 s20, 10"); e("s_cbranch_scc1 G1_epq")
    srd(8, 18, 19, OH_SZ, OH_OFF)
    e("s_sub_u32 s24, s20, 10"); e("s_mul_i32 s24, s24, 96"); e("s_add_u32 s24, s24, 640")
    e("v_add_u32 v11, s24, v11")
    e("v_mul_u32_u24 v10, 4352, v10"); e("v_lshl_add_u32 v10, v11, 1, v10")
    e("s_mov_b32 s36, 0xbfb8aa3b")
    for mb in range(4):
        for jb in range(3):
            g = ACC + (jb*4+mb)*4; u = ACC + ((3+jb)*4+mb)*4
            for i in range(4):
                bf16r(f"v{g+i}", f"v{g+i}"); bf16r(f"v{u+i}", f"v{u+i}")
                e(f"v_mul_f32 v12, s36, v{g+i}"); e("v_exp_f32 v12, v12"); e("s_nop 0")
                e("v_add_f32 v12, 1.0, v12"); e("v_rcp_f32 v12, v12"); e("s_nop 0")
                e(f"v_mul_f32 v12, v{g+i}, v12")
                bf16r("v12", "v12")
                e(f"v_mul_f32 v{g+i}, v12, v{u+i}")
            e(f"v_cvt_pk_bf16_f32 v{g}, v{g}, v{g+1}"); e(f"v_cvt_pk_bf16_f32 v{g+1}, v{g+2}, v{g+3}")
            e(f"buffer_store_dwordx2 v[{g}:{g+1}], v10, s[8:11], 0 offen offset:{jb*32}")
        e(f"v_add_u32 v10, {16*4352}, v10")
    e("s_branch G1_done")
    lab("G1_epq")
    srd(8, 18, 19, QKV_SZ, QKV_OFF)
    e("s_mul_i32 s24, s20, 192"); e("v_add_u32 v11, s24, v11")
    e("v_mul_u32_u24 v10, 3840, v10"); e("v_lshl_add_u32 v10, v11, 1, v10")
    for mb in range(4):
        for nb in range(6):
            g = ACC + (nb*4+mb)*4
            e(f"v_cvt_pk_bf16_f32 v{g}, v{g}, v{g+1}"); e(f"v_cvt_pk_bf16_f32 v{g+1}, v{g+2}, v{g+3}")
            e(f"buffer_store_dwordx2 v[{g}:{g+1}], v10, s[8:11], 0 offen offset:{(nb//3)*192+(nb%3)*32}")
        e(f"v_add_u32 v10, {16*3840}, v10")
    lab("G1_done"); e("s_endpgm")
    kdesc("g1_kernel", 208)

def gen_at():
    kstart("at_kernel")
    e("s_cmp_ge_u32 s2, 256"); e("s_cbranch_scc1 AT_done")
    e("s_load_dwordx2 s[18:19], s[0:1], 72")
    e("s_lshl_b32 s3, s2, 8"); e("v_add_u32 v1, s3, v0")
    e("v_lshrrev_b32 v2, 5, v1"); e("v_and_b32 v3, 31, v1")
    e("v_mul_u32_u24 v3, 40, v3")
    e("s_waitcnt lgkmcnt(0)")
    srd(8, 18, 19, QKV_SZ, QKV_OFF); srd(12, 18, 19, OH_SZ, OH_OFF)
    e("v_mul_u32_u24 v4, 3840, v2"); e("v_add_u32 v4, v4, v3")
    Q=10; K=20; L=100
    for i in range(5): e(f"buffer_load_dwordx2 v[{Q+2*i}:{Q+2*i+1}], v4, s[8:11], 0 offen offset:{8*i}")
    for w in range(8):
        e(f"v_subrev_u32 v5, {2*w}, v2"); e("v_max_i32 v5, 0, v5")
        e("v_mul_u32_u24 v5, 3840, v5"); e(f"v_add_u32 v{110+w}, v5, v3")
        for i in range(5):
            e(f"buffer_load_dwordx2 v[{K+10*w+2*i}:{K+10*w+2*i+1}], v{110+w}, s[8:11], 0 offen offset:{1280+8*i}")
    e("s_waitcnt vmcnt(0)")
    e("s_mov_b32 s20, 0x3e64f92e")
    e("s_mov_b32 s21, 0xce6e0000")
    for w in range(8):
        e(f"v_mov_b32 v{L+w}, 0")
        for i in range(10): e(f"v_dot2_f32_bf16 v{L+w}, v{Q+i}, v{K+10*w+i}, v{L+w}")
        e("s_nop 3")
        bf16r(f"v{L+w}", f"v{L+w}"); e(f"v_mul_f32 v{L+w}, s20, v{L+w}"); bf16r(f"v{L+w}", f"v{L+w}")
        if w:
            e(f"v_cmp_le_u32 vcc, {2*w}, v2"); e("v_mov_b32 v5, s21"); e("s_nop 1")
            e(f"v_cndmask_b32 v{L+w}, v5, v{L+w}, vcc")
    for w in range(8):
        for i in range(5):
            e(f"buffer_load_dwordx2 v[{K+10*w+2*i}:{K+10*w+2*i+1}], v{110+w}, s[8:11], 0 offen offset:{2560+8*i}")
    e(f"v_max_f32 v5, v{L}, v{L+1}")
    for w in range(2,8): e(f"v_max_f32 v5, v5, v{L+w}")
    e("s_mov_b32 s22, 0x3fb8aa3b")
    e("v_mov_b32 v6, 0")
    for w in range(8):
        e(f"v_sub_f32 v{L+w}, v{L+w}, v5"); e(f"v_mul_f32 v{L+w}, s22, v{L+w}"); e(f"v_exp_f32 v{L+w}, v{L+w}")
        e("s_nop 0"); e(f"v_add_f32 v6, v6, v{L+w}")
    e("v_rcp_f32 v6, v6"); e("s_nop 0")
    for w in range(8):
        e(f"v_mul_f32 v{L+w}, v{L+w}, v6"); bf16r(f"v{L+w}", f"v{L+w}")
    e("s_waitcnt vmcnt(0)")
    O=120
    for d in range(20): e(f"v_mov_b32 v{O+d}, 0")
    for w in range(8):
        for i in range(10):
            e(f"v_lshlrev_b32 v5, 16, v{K+10*w+i}"); e(f"v_fmac_f32 v{O+2*i}, v{L+w}, v5")
            e(f"v_and_b32 v5, 0xffff0000, v{K+10*w+i}"); e(f"v_fmac_f32 v{O+2*i+1}, v{L+w}, v5")
    for i in range(10): e(f"v_cvt_pk_bf16_f32 v{Q+i}, v{O+2*i}, v{O+2*i+1}")
    e("v_mul_u32_u24 v4, 4352, v2"); e("v_add_u32 v4, v4, v3")
    for i in range(5): e(f"buffer_store_dwordx2 v[{Q+2*i}:{Q+2*i+1}], v4, s[12:15], 0 offen offset:{8*i}")
    lab("AT_done"); e("s_endpgm")
    kdesc("at_kernel", 140)

def gen_g2():
    kstart("g2_kernel")
    WB = 40960; STG = 20480
    e("s_cmp_ge_u32 s2, 256"); e("s_cbranch_scc1 G2_done")
    e("s_load_dwordx2 s[4:5], s[0:1], 16")
    e("s_load_dwordx2 s[6:7], s[0:1], 48")
    e("s_load_dwordx2 s[16:17], s[0:1], 0")
    e("s_load_dwordx2 s[18:19], s[0:1], 72")
    e("s_load_dwordx2 s[40:41], s[0:1], 56")
    e("s_and_b32 s3, s2, 7"); e("s_lshr_b32 s20, s2, 3")
    e("s_lshr_b32 s21, s20, 3"); e("s_lshl_b32 s3, s3, 2"); e("s_add_u32 s21, s21, s3")
    e("s_and_b32 s20, s20, 7")
    e("v_lshrrev_b32 v1, 6, v0"); e("v_and_b32 v2, 63, v0"); e("s_nop 0")
    e("v_readfirstlane_b32 s22, v1")
    e("s_waitcnt lgkmcnt(0)")
    srd(8, 18, 19, OH_SZ, OH_OFF)
    e("s_cmp_eq_u32 s22, 0"); e("s_cselect_b32 s26, s4, s6"); e("s_cselect_b32 s27, s5, s7")
    e("s_mov_b32 s39, 1536*1280"); e("s_cselect_b32 s28, 640*1280, s39")
    e("s_mov_b32 s12, s26"); e("s_and_b32 s13, s27, 0xffff"); e("s_mov_b32 s14, s28"); e("s_mov_b32 s15, 0x00020000")
    e("s_sub_u32 s29, s22, 1"); e("s_lshl_b32 s29, s29, 9")
    e("s_cmp_eq_u32 s22, 0"); e("s_cselect_b32 s29, 0, s29")
    e("s_add_u32 s30, s29, 640"); e("s_cmp_eq_u32 s22, 0"); e("s_cselect_b32 s30, 0, s30")
    e("s_cselect_b32 s31, 5, 4")
    e("s_lshl_b32 s32, s30, 1")
    e("s_lshl_b32 s36, s21, 6"); e("s_mul_i32 s36, s36, 4352"); e("s_add_u32 s32, s32, s36")
    e("s_mul_i32 s33, s29, 1280")
    e("s_mul_i32 s37, s20, 160"); e("s_add_u32 s33, s33, s37")
    e("v_lshrrev_b32 v10, 3, v2"); e("v_and_b32 v11, 7, v2")
    for i in range(2):
        e(f"v_add_u32 v12, {8*i}, v10"); e("v_bfe_u32 v13, v12, 1, 3"); e("v_xor_b32 v13, v13, v11")
        e("v_mul_u32_u24 v12, 4352, v10"); e(f"v_lshl_add_u32 v{4+i}, v13, 4, v12")
    for q in range(12):
        e(f"v_add_u32 v20, {64*q}, v2")
        e("v_mul_u32_u24 v21, 43691, v20"); e("v_lshrrev_b32 v21, 19, v21")
        e("v_mul_u32_u24 v22, 12, v21"); e("v_sub_u32 v22, v20, v22")
        e("v_bfe_u32 v23, v21, 3, 1"); e("v_lshlrev_b32 v23, 1, v23"); e("v_xor_b32 v22, v22, v23")
        e("v_mul_u32_u24 v21, 1280, v21")
        e(f"v_lshl_add_u32 v{6+q}, v22, 4, v21")
    e("v_mul_u32_u24 v29, 40960, v1")
    e("v_and_b32 v184, 15, v2"); e("v_lshrrev_b32 v185, 4, v2")
    e("v_lshrrev_b32 v186, 1, v184"); e("v_xor_b32 v186, v186, v185")
    e("v_lshl_add_u32 v187, v184, 7, v29")
    e("v_lshl_add_u32 v18, v186, 4, v187"); e("v_xor_b32 v19, 64, v18")
    e("v_lshrrev_b32 v186, 2, v184"); e("v_and_b32 v187, 3, v184")
    e("v_lshl_add_u32 v26, v185, 3, v186"); e("v_mul_u32_u24 v26, 192, v26")
    e("v_and_b32 v27, 1, v187"); e("v_lshl_add_u32 v26, v27, 3, v26"); e("v_add_u32 v26, v26, v29")
    for jb in range(5):
        e("v_lshrrev_b32 v28, 1, v187"); e(f"v_add_u32 v27, {2*jb}, v28")
        e("v_and_b32 v28, 1, v185"); e("v_lshlrev_b32 v28, 1, v28"); e("v_xor_b32 v27, v27, v28")
        e(f"v_lshl_add_u32 v{20+jb}, v27, 4, v26")
    ACC=32
    for i in range(80): e(f"v_mov_b32 v{ACC+i}, 0")
    XF=112; WF=144
    e("s_mul_i32 s34, s22, 40960")
    def dma(b):
        for q in range(8):
            e(f"s_add_u32 m0, s34, {b*STG + q*1024}")
            e(f"s_add_u32 s38, s32, {q*8*4352}")
            e(f"buffer_load_dwordx4 v{4+(q&1)}, s[8:11], s38 offen lds")
        for q in range(12):
            e(f"s_add_u32 m0, s34, {b*STG + 8192 + q*1024}"); e("s_nop 0")
            e(f"buffer_load_dwordx4 v{6+q}, s[12:15], s33 offen lds")
        e("s_add_u32 s32, s32, 128"); e("s_add_u32 s33, s33, 64*1280")
    dma(0)
    e("s_mov_b32 s35, 1")
    lab("G2_loop")
    for b in range(2):
        if b == 0:
            dma(1); e("s_waitcnt vmcnt(20)")
        else:
            e("s_cmp_eq_u32 s35, s31"); e("s_cbranch_scc1 G2_last")
            dma(0); e("s_waitcnt vmcnt(20)"); e("s_branch G2_go")
            lab("G2_last"); e("s_waitcnt vmcnt(0)"); lab("G2_go")
        for kk in range(2):
            for mb in range(4):
                e(f"ds_read_b128 v[{XF+kk*16+mb*4}:{XF+kk*16+mb*4+3}], v{18+kk} offset:{b*STG+mb*2048}")
            for jb in range(5):
                for h in range(2):
                    r = WF+kk*20+jb*4+h*2
                    e(f"ds_read_b64_tr_b16 v[{r}:{r+1}], v{20+jb} offset:{b*STG+8192+kk*6144+h*768}")
        for kk in range(2):
            e(f"s_waitcnt lgkmcnt({14 if kk==0 else 0})")
            for nb in range(5):
                for mb in range(4):
                    a = ACC+(nb*4+mb)*4; w = WF+kk*20+nb*4; x = XF+kk*16+mb*4
                    e(f"v_mfma_f32_16x16x32_bf16 v[{a}:{a+3}], v[{w}:{w+3}], v[{x}:{x+3}], v[{a}:{a+3}]")
    e("s_add_u32 s35, s35, 1"); e("s_cmp_le_u32 s35, s31"); e("s_cbranch_scc1 G2_loop")
    e("s_nop 7"); e("s_nop 7")
    e("v_lshl_add_u32 v10, v2, 4, v29")
    e("s_cmp_eq_u32 s22, 0"); e("s_cbranch_scc1 G2_w0")
    for i in range(20): e(f"ds_write_b128 v10, v[{ACC+4*i}:{ACC+4*i+3}] offset:{i*1024}")
    e("s_waitcnt lgkmcnt(0)"); e("s_barrier"); e("s_branch G2_done")
    lab("G2_w0")
    srd(8, 16, 17, XN_SZ); srd(12, 40, 41, XN_SZ)
    e("v_and_b32 v11, 15, v2"); e("v_lshrrev_b32 v12, 4, v2")
    e("s_lshl_b32 s36, s21, 6"); e("v_add_u32 v11, s36, v11"); e("v_mul_u32_u24 v11, 1280, v11")
    e("s_mul_i32 s37, s20, 80"); e("v_lshl_add_u32 v12, v12, 2, s37"); e("v_lshl_add_u32 v11, v12, 1, v11")
    e(f"v_add_u32 v13, {WB}, v10"); e(f"v_add_u32 v14, {2*WB}, v10"); e(f"v_add_u32 v15, {3*WB}, v10")
    e("s_barrier")
    for mb in range(4):
        for nb in range(5):
            i = nb*4+mb; a = ACC+4*i
            e(f"buffer_load_dwordx2 v[4:5], v11, s[8:11], 0 offen offset:{nb*32}")
            e(f"ds_read_b128 v[112:115], v13 offset:{i*1024}")
            e(f"ds_read_b128 v[116:119], v14 offset:{i*1024}")
            e(f"ds_read_b128 v[120:123], v15 offset:{i*1024}")
            e("s_waitcnt vmcnt(0) lgkmcnt(0)")
            e("v_lshlrev_b32 v6, 16, v4"); e("v_and_b32 v7, 0xffff0000, v4")
            e("v_lshlrev_b32 v8, 16, v5"); e("v_and_b32 v9, 0xffff0000, v5")
            for j in range(4):
                e(f"v_add_f32 v{112+j}, v{112+j}, v{116+j}"); e(f"v_add_f32 v{112+j}, v{112+j}, v{120+j}")
                bf16r(f"v{112+j}", f"v{112+j}"); bf16r(f"v{a+j}", f"v{a+j}")
                e(f"v_add_f32 v{a+j}, v{6+j}, v{a+j}"); bf16r(f"v{a+j}", f"v{a+j}")
                e(f"v_add_f32 v{a+j}, v{a+j}, v{112+j}")
            e(f"v_cvt_pk_bf16_f32 v{a}, v{a}, v{a+1}"); e(f"v_cvt_pk_bf16_f32 v{a+1}, v{a+2}, v{a+3}")
            e(f"buffer_store_dwordx2 v[{a}:{a+1}], v11, s[12:15], 0 offen offset:{nb*32}")
        e(f"v_add_u32 v11, {16*1280}, v11")
    lab("G2_done"); e("s_endpgm")
    kdesc("g2_kernel", 190)

HEAD = open("parallel_sum__sliding_local_dilated__glu_gated_swiglu__prompt.s.ref").read().split("; @launch")[0]
gen_ln(); gen_g1(); gen_at(); gen_g2()
txt = HEAD + """; @launch kernel=ln_kernel grid=(512,1,1) block=(256,1,1) lds=0
; @launch kernel=g1_kernel grid=(208,1,1) block=(512,1,1) lds=114688
; @launch kernel=at_kernel grid=(256,1,1) block=(256,1,1) lds=0
; @launch kernel=g2_kernel grid=(256,1,1) block=(256,1,1) lds=163840
.amdgcn_target "amdgcn-amd-amdhsa--gfx950"
.text
""" + "\n".join(OUT) + '\n.section .rodata,"a"\n' + "\n".join(DESCS) + "\n"
open("parallel_sum__sliding_local_dilated__glu_gated_swiglu__prompt.s", "w").write(txt)
```

```python
import sys, os
X=os.environ.get("GX","")
OUT = []
def e(s): OUT.append("    " + s)
def lab(s): OUT.append(s + ":")
def c(s): OUT.append("    ; " + s)

XN_OFF  = 0x0
QKV_OFF = 0x300000
OH_OFF  = 0xB00000
XN_SZ, QKV_SZ, OH_SZ = 2048*1280, 2048*3840, 2048*4352

def srd(d, lo, hi, size, add=0):
    if add:
        e(f"s_add_u32 s{d}, s{lo}, {add:#x}")
        e(f"s_addc_u32 s{d+1}, s{hi}, 0")
    else:
        e(f"s_mov_b32 s{d}, s{lo}")
        e(f"s_mov_b32 s{d+1}, s{hi}")
    e(f"s_and_b32 s{d+1}, s{d+1}, 0xffff")
    e(f"s_mov_b32 s{d+2}, {size:#x}")
    e(f"s_mov_b32 s{d+3}, 0x00020000")

def kstart(name):
    OUT.append(f".globl {name}\n.p2align 8\n.type {name},@function\n{name}:")

DESCS = []
def kdesc(name, vgpr, sgpr=96):
    acc = ((vgpr + 3)//4)*4
    DESCS.append(f""".p2align 6
.amdhsa_kernel {name}
  .amdhsa_next_free_vgpr {vgpr}
  .amdhsa_next_free_sgpr {sgpr}
  .amdhsa_accum_offset {acc}
  .amdhsa_group_segment_fixed_size 0
  .amdhsa_kernarg_size 80
  .amdhsa_user_sgpr_count 2
  .amdhsa_user_sgpr_kernarg_segment_ptr 1
  .amdhsa_system_sgpr_workgroup_id_x 1
.end_amdhsa_kernel""")

def bf16r(dst, src):
    e(f"v_cvt_pk_bf16_f32 {dst}, {src}, {src}")
    e(f"v_lshlrev_b32 {dst}, 16, {dst}")

def wave_sum(v, tmp, sdst):
    for m in (1,2,4,8,16):
        e(f"ds_swizzle_b32 {tmp}, {v} offset:{(m<<10)|0x1f:#x}")
        e("s_waitcnt lgkmcnt(0)")
        e(f"v_add_f32 {v}, {v}, {tmp}")
    e("s_nop 1")
    e(f"v_readlane_b32 {sdst}, {v}, 32")
    e("s_nop 3")
    e(f"v_add_f32 {v}, {sdst}, {v}")
    e("s_nop 1")
    e(f"v_readlane_b32 {sdst}, {v}, 0")
    e("s_nop 3")

def gen_ln():
    kstart("ln_kernel")
    e("s_cmp_ge_u32 s2, 512"); e("s_cbranch_scc1 LN_done")
    e("s_load_dwordx2 s[4:5], s[0:1], 0")
    e("s_load_dwordx2 s[6:7], s[0:1], 72")
    e("v_lshrrev_b32 v1, 6, v0")
    e("v_and_b32 v2, 63, v0")
    e("s_lshl_b32 s3, s2, 2")
    e("v_add_u32 v1, s3, v1")
    e("v_mul_u32_u24 v1, 1280, v1")
    e("v_lshl_add_u32 v3, v2, 4, v1")
    e("v_lshl_add_u32 v4, v2, 2, v1")
    e("v_add_u32 v4, 1024, v4")
    e("s_waitcnt lgkmcnt(0)")
    srd(8, 4, 5, XN_SZ)
    srd(12, 6, 7, XN_SZ, XN_OFF)
    e("buffer_load_dwordx4 v[8:11], v3, s[8:11], 0 offen")
    e("buffer_load_dword v12, v4, s[8:11], 0 offen")
    e("s_waitcnt vmcnt(0)")
    for i in range(5):
        e(f"v_lshlrev_b32 v{16+2*i}, 16, v{8+i}")
        e(f"v_and_b32 v{17+2*i}, 0xffff0000, v{8+i}")
    e("v_add_f32 v30, v16, v17")
    for i in range(2,10): e(f"v_add_f32 v30, v30, v{16+i}")
    wave_sum("v30", "v31", "s20")
    e("v_mov_b32 v32, 0x3acccccd")
    e("v_mul_f32 v33, s20, v32")
    e("v_sub_f32 v34, v16, v33"); e("v_mul_f32 v30, v34, v34")
    for i in range(1,10):
        e(f"v_sub_f32 v34, v{16+i}, v33"); e("v_fmac_f32 v30, v34, v34")
    wave_sum("v30", "v31", "s20")
    e("v_mul_f32 v35, s20, v32")
    bf16r("v33", "v33"); bf16r("v35", "v35")
    e("v_add_f32 v35, 0x3727c5ac, v35")
    bf16r("v35", "v35")
    e("v_sqrt_f32 v35, v35"); e("s_nop 0")
    bf16r("v35", "v35")
    e("v_rcp_f32 v36, v35"); e("s_nop 0")
    for i in range(10):
        e(f"v_sub_f32 v{16+i}, v{16+i}, v33")
        bf16r(f"v{16+i}", f"v{16+i}")
        e(f"v_mul_f32 v37, v{16+i}, v36")
        e(f"v_fma_f32 v38, -v37, v35, v{16+i}")
        e(f"v_fma_f32 v{16+i}, v38, v36, v37")
    for i in range(5):
        e(f"v_cvt_pk_bf16_f32 v{8+i}, v{16+2*i}, v{17+2*i}")
    e("buffer_store_dwordx4 v[8:11], v3, s[12:15], 0 offen")
    e("buffer_store_dword v12, v4, s[12:15], 0 offen")
    lab("LN_done"); e("s_endpgm")
    kdesc("ln_kernel", 40)

def gen_g1():
    kstart("g1_kernel")
    STG = 28672; NB = 5; NT = 20
    e("s_cmp_ge_u32 s2, 208"); e("s_cbranch_scc1 G1_done")
    if 'clk' in X:
        e("s_memtime s[60:61]"); e("s_memrealtime s[62:63]"); e("s_load_dwordx2 s[64:65], s[0:1], 64")
    e("s_load_dwordx2 s[4:5], s[0:1], 8")
    e("s_load_dwordx2 s[6:7], s[0:1], 32")
    e("s_load_dwordx2 s[16:17], s[0:1], 40")
    e("s_load_dwordx2 s[18:19], s[0:1], 72")
    e("s_and_b32 s3, s2, 7"); e("s_mul_i32 s3, s3, 26"); e("s_lshr_b32 s20, s2, 3"); e("s_add_u32 s3, s3, s20")
    e("s_lshr_b32 s20, s3, 3")
    e("s_and_b32 s21, s3, 7")
    e("v_lshrrev_b32 v1, 6, v0"); e("v_and_b32 v2, 63, v0"); e("s_nop 0")
    e("v_readfirstlane_b32 s22, v1")
    e("s_waitcnt lgkmcnt(0)")
    srd(8, 18, 19, XN_SZ, XN_OFF)
    e("s_cmp_ge_u32 s22, 3"); e("s_cselect_b32 s23, 1, 0")
    e("s_cmp_lt_u32 s20, 10"); e("s_cbranch_scc1 G1_qkvsetup")
    e("s_sub_u32 s24, s20, 10"); e("s_mul_i32 s24, s24, 192")
    e("s_cmp_eq_u32 s23, 0"); e("s_cselect_b32 s26, s6, s16"); e("s_cselect_b32 s27, s7, s17")
    e("s_mov_b32 s25, 3072")
    srd(12, 26, 27, 640*3072)
    e("s_branch G1_setup2")
    lab("G1_qkvsetup")
    e("s_mul_i32 s24, s20, 384"); e("s_mul_i32 s25, s23, 192"); e("s_add_u32 s24, s24, s25")
    e("s_mov_b32 s25, 3840")
    srd(12, 4, 5, 640*3840)
    lab("G1_setup2")
    e("s_lshl_b32 s28, s21, 8")
    e("s_mov_b32 s38, s10"); e("s_mov_b32 s39, s14")
    e("v_bfe_u32 v10, v2, 4, 2"); e("v_lshlrev_b32 v10, 1, v10"); e("v_mov_b32 v11, 0x78")
    e("v_lshrrev_b32 v10, v10, v11"); e("v_and_b32 v10, 3, v10")
    e("v_and_b32 v11, 3, v2"); e("v_xor_b32 v10, v10, v11")
    e("v_lshrrev_b32 v11, 2, v2"); e("v_lshl_add_u32 v11, v1, 5, v11"); e("v_add_u32 v11, s28, v11")
    e("v_mul_u32_u24 v11, 1280, v11"); e("v_lshl_add_u32 v4, v10, 4, v11")
    e("v_add_u32 v5, 20480, v4")
    e("s_lshl_b32 s29, s22, 1"); e("s_add_u32 s30, s22, 4"); e("s_cmp_lt_u32 s22, 4"); e("s_cselect_b32 s29, s29, s30")
    e("s_cmp_ge_u32 s29, 6"); e("s_cselect_b32 s30, 6, 0"); e("s_sub_u32 s30, s29, s30")
    e("s_lshl_b32 s30, s30, 6")
    for i in range(2):
        e(f"v_add_u32 v11, s30, v2")
        if i: e("v_add_u32 v11, 64, v11")
        e("v_mul_u32_u24 v12, 43691, v11"); e("v_lshrrev_b32 v12, 19, v12")
        e("v_mul_u32_u24 v13, 12, v12"); e("v_sub_u32 v13, v11, v13")
        e("v_bfe_u32 v17, v12, 3, 1"); e("v_lshlrev_b32 v17, 1, v17"); e("v_xor_b32 v13, v13, v17")
        e("v_mul_lo_u32 v12, v12, s25")
        e("v_lshl_add_u32 v12, v13, 4, v12")
        e(f"v_add_u32 v{6+i}, s24, v12")
    e("v_and_b32 v10, 15, v2"); e("v_lshrrev_b32 v11, 4, v2")
    e("v_lshrrev_b32 v12, 2, v10"); e("v_lshlrev_b32 v12, 1, v12"); e("v_mov_b32 v13, 0x78")
    e("v_lshrrev_b32 v12, v12, v13"); e("v_and_b32 v12, 3, v12"); e("v_xor_b32 v12, v12, v11")
    e("v_and_b32 v13, 3, v1"); e("v_lshlrev_b32 v13, 12, v13")
    e("v_lshl_add_u32 v13, v10, 6, v13")
    e("v_lshl_add_u32 v18, v12, 4, v13")
    e("v_lshrrev_b32 v12, 2, v10"); e("v_and_b32 v13, 3, v10")
    e("v_lshrrev_b32 v17, 2, v1")
    e("v_lshl_add_u32 v26, v11, 3, v12"); e("v_mul_u32_u24 v26, 192, v26")
    e("v_and_b32 v27, 1, v13"); e("v_lshl_add_u32 v26, v27, 3, v26")
    e("v_mul_u32_u24 v27, 6, v17"); e("v_lshrrev_b32 v28, 1, v13"); e("v_add_u32 v27, v27, v28")
    e("v_and_b32 v28, 1, v11"); e("v_lshlrev_b32 v28, 1, v28")
    for jb in range(3):
        e(f"v_add_u32 v29, {2*jb}, v27"); e("v_xor_b32 v29, v29, v28")
        e(f"v_lshl_add_u32 v{19+jb}, v29, 4, v26")
    ACC = 32
    for i in range(96): e(f"v_mov_b32 v{ACC+i}, 0")
    XF = 128; WF = 144
    e("s_lshl_b32 s30, s22, 11")
    e("s_lshl_b32 s31, s29, 10"); e("s_add_u32 s31, s31, 16384")
    e("s_mov_b32 s32, 0"); e("s_mov_b32 s33, 0"); e("s_lshl_b32 s34, s25, 5")
    cnt=[0]
    def dma():
        cnt[0]+=1
        e("s_cmp_lt_i32 s35, 16"); e("s_cselect_b32 s10, s38, 0"); e("s_cselect_b32 s14, s39, 0")
        e("s_add_u32 s40, s30, s36"); e("s_add_u32 s41, s31, s36")
        e("s_mov_b32 m0, s40"); e("s_add_u32 s40, s40, 1024")
        e("buffer_load_dwordx4 v4, s[8:11], s32 offen lds")
        e("s_mov_b32 m0, s40"); e("s_nop 0")
        e("buffer_load_dwordx4 v5, s[8:11], s32 offen lds")
        e("s_mov_b32 m0, s41"); e("s_add_u32 s41, s41, 1024")
        e("buffer_load_dwordx4 v6, s[12:15], s33 offen lds")
        e("s_cmp_ge_u32 s22, 4"); e(f"s_cbranch_scc1 G1_sk{cnt[0]}")
        e("s_mov_b32 m0, s41"); e("s_nop 0")
        e("buffer_load_dwordx4 v7, s[12:15], s33 offen lds")
        lab(f"G1_sk{cnt[0]}")
        e("s_add_u32 s32, s32, 64"); e("s_add_u32 s33, s33, s34")
        e(f"s_add_u32 s36, s36, {STG}"); e(f"s_cmp_eq_u32 s36, {NB*STG}"); e("s_cselect_b32 s36, 0, s36")
    def waitv(k):
        cnt[0]+=1
        e("s_cmp_ge_u32 s22, 4"); e(f"s_cbranch_scc1 G1_wa{cnt[0]}")
        e(f"s_waitcnt vmcnt({4*k})"); e(f"s_branch G1_wb{cnt[0]}")
        lab(f"G1_wa{cnt[0]}"); e(f"s_waitcnt vmcnt({3*k})"); lab(f"G1_wb{cnt[0]}")
    def addrs():
        e("v_add_u32 v22, s37, v18"); e("v_add_u32 v23, s37, v19"); e("v_add_u32 v24, s37, v20"); e("v_add_u32 v25, s37, v21")
        e(f"s_add_u32 s37, s37, {STG}"); e(f"s_cmp_eq_u32 s37, {NB*STG}"); e("s_cselect_b32 s37, 0, s37")
    def reads(fs):
        L=[]
        xf = XF+40*fs; wf = WF+40*fs
        for mb in range(4): L.append(f"ds_read_b128 v[{xf+mb*4}:{xf+mb*4+3}], v22 offset:{mb*1024}")
        for s_ in range(2):
            for jb in range(3):
                for h in range(2):
                    r_ = wf + (s_*3+jb)*4 + h*2
                    L.append(f"ds_read_b64_tr_b16 v[{r_}:{r_+1}], v{23+jb} offset:{16384+s_*6144+h*768}")
        return L
    e("s_mov_b32 s35, -4"); e("s_mov_b32 s36, 0"); e("s_mov_b32 s37, 0")
    lab("G1_pro")
    dma()
    e("s_add_u32 s35, s35, 1"); e("s_cmp_lt_i32 s35, 0"); e("s_cbranch_scc1 G1_pro")
    waitv(3); addrs(); e("s_barrier")
    for r in reads(0): e(r)
    if 'clk' in X: e("s_memtime s[80:81]")
    lab("G1_loop")
    for fs in range(2):
        waitv(2); addrs(); e("s_barrier")
        dma()
        e("s_waitcnt lgkmcnt(0)")
        R = reads(1-fs); k = 0
        xf = XF+40*fs; wf = WF+40*fs
        for nb in range(6):
            for mb in range(4):
                a_ = ACC + (nb*4+mb)*4; w = wf+nb*4; x = xf+mb*4
                e(f"v_mfma_f32_16x16x32_bf16 v[{a_}:{a_+3}], v[{w}:{w+3}], v[{x}:{x+3}], v[{a_}:{a_+3}]")
                if k < 16 and (nb*4+mb) % 4 != 3: e(R[k]); k += 1
        e("s_add_u32 s35, s35, 1")
    e(f"s_cmp_lt_i32 s35, {NT}"); e("s_cbranch_scc1 G1_loop")
    e("s_waitcnt lgkmcnt(0)")
    if 'clk' in X: e("s_memtime s[82:83]")
    e("s_waitcnt vmcnt(0)")
    e("s_barrier")
    e("v_and_b32 v10, 15, v2"); e("v_lshrrev_b32 v11, 4, v2")
    e("v_and_b32 v12, 3, v1"); e("v_lshl_add_u32 v10, v12, 6, v10"); e("v_add_u32 v10, s28, v10")
    e("v_lshrrev_b32 v12, 2, v1"); e("v_mul_u32_u24 v12, 48, v12"); e("v_lshl_add_u32 v11, v11, 2, v12")
    for i in range(24):
        g = ACC + 4*i
        e(f"v_cvt_pk_bf16_f32 v{128+2*i}, v{g}, v{g+1}"); e(f"v_cvt_pk_bf16_f32 v{129+2*i}, v{g+2}, v{g+3}")
    e("v_subrev_u32 v10, s28, v10")
    TB = 98304
    e("s_cmp_lt_u32 s20, 10"); e("s_cbranch_scc1 G1_epq")
    srd(8, 18, 19, OH_SZ, OH_OFF)
    e("s_sub_u32 s24, s20, 10"); e("s_mul_i32 s24, s24, 192"); e("s_add_u32 s24, s24, 1280")
    e("s_mul_i32 s25, s28, 4352"); e("s_add_u32 s24, s24, s25")
    e("s_mov_b32 s25, 4352"); e("s_mov_b32 s26, 5462"); e("s_mov_b32 s27, 12"); e("s_mov_b32 s29, 208"); e("s_mov_b32 s30, 6")
    e("v_mul_u32_u24 v10, 208, v10"); e("v_lshl_add_u32 v10, v11, 1, v10"); e(f"v_add_u32 v10, {TB}, v10")
    e("v_mul_u32_u24 v12, 12288, v1"); e("v_lshl_add_u32 v12, v2, 3, v12")
    for i in range(24): e(f"ds_write_b64 v12, v[{128+2*i}:{129+2*i}] offset:{i*512}")
    e("s_mov_b32 s36, 0xbfb8aa3b"); e("s_mov_b32 s35, 0")
    e("s_waitcnt lgkmcnt(0)")
    lab("G1_eloop")
    e("ds_read_b64 v[32:33], v12"); e("ds_read_b64 v[34:35], v12 offset:6144")
    e("v_add_u32 v12, 512, v12")
    e("s_waitcnt lgkmcnt(0)")
    for j in range(4):
        src = 32 + (j>>1); usrc = 34 + (j>>1)
        if j&1: e(f"v_and_b32 v{40+j}, 0xffff0000, v{src}"); e(f"v_and_b32 v{44+j}, 0xffff0000, v{usrc}")
        else:   e(f"v_lshlrev_b32 v{40+j}, 16, v{src}"); e(f"v_lshlrev_b32 v{44+j}, 16, v{usrc}")
    for j in range(4): e(f"v_mul_f32 v{48+j}, s36, v{40+j}")
    for j in range(4): e(f"v_exp_f32 v{48+j}, v{48+j}")
    for j in range(4): e(f"v_add_f32 v{48+j}, 1.0, v{48+j}")
    for j in range(4): e(f"v_rcp_f32 v{48+j}, v{48+j}")
    for j in range(4): e(f"v_mul_f32 v{48+j}, v{40+j}, v{48+j}")
    for j in range(4): bf16r(f"v{48+j}", f"v{48+j}")
    for j in range(4): e(f"v_mul_f32 v{48+j}, v{48+j}, v{44+j}")
    e("v_cvt_pk_bf16_f32 v36, v48, v49"); e("v_cvt_pk_bf16_f32 v37, v50, v51")
    e("ds_write_b64 v10, v[36:37]")
    e("s_add_u32 s35, s35, 1")
    e("s_and_b32 s38, s35, 3"); e(f"s_mov_b32 s39, {-16*208}"); e("s_cmp_eq_u32 s38, 0"); e(f"s_cselect_b32 s38, {48*208-32}, s39"); e("v_subrev_u32 v10, s38, v10")
    e("s_cmp_lt_u32 s35, 12"); e("s_cbranch_scc1 G1_eloop")
    e("s_branch G1_copy")
    lab("G1_epq")
    srd(8, 18, 19, QKV_SZ, QKV_OFF)
    e("s_mul_i32 s24, s20, 384"); e("s_mul_i32 s25, s28, 3840"); e("s_add_u32 s24, s24, s25")
    e("s_mov_b32 s25, 3840"); e("s_mov_b32 s26, 2731"); e("s_mov_b32 s27, 24"); e("s_mov_b32 s29, 400"); e("s_mov_b32 s30, 12")
    e("v_mul_u32_u24 v10, 400, v10"); e("v_lshl_add_u32 v10, v11, 1, v10"); e(f"v_add_u32 v10, {TB-102400+61440}, v10")
    for mb in range(4):
        for nb in range(6):
            i = nb*4+mb
            e(f"ds_write_b64 v10, v[{128+2*i}:{129+2*i}] offset:{mb*6400+(nb//3)*192+(nb%3)*32}")
    lab("G1_copy")
    if 'clk' in X: e("s_memtime s[84:85]")
    e(f"s_mov_b32 s39, {TB}"); e("s_cmp_lt_u32 s20, 10"); e(f"s_cselect_b32 s31, {TB-102400+61440}, s39")
    e("s_waitcnt lgkmcnt(0)"); e("s_barrier")
    e("s_mov_b32 s35, 0")
    lab("G1_cloop")
    e("v_mul_lo_u32 v10, v0, s26"); e("v_lshrrev_b32 v10, 16, v10")
    e("v_mul_lo_u32 v11, v10, s27"); e("v_sub_u32 v11, v0, v11")
    e("v_mul_lo_u32 v12, v10, s29"); e("v_lshl_add_u32 v12, v11, 4, v12"); e("v_add_u32 v12, s31, v12")
    e("ds_read_b128 v[32:35], v12")
    e("v_mul_lo_u32 v13, v10, s25"); e("v_lshl_add_u32 v13, v11, 4, v13")
    e("v_add_u32 v0, 512, v0")
    e("s_waitcnt lgkmcnt(0)")
    e("buffer_store_dwordx4 v[32:35], v13, s[8:11], s24 offen")
    e("s_add_u32 s35, s35, 1"); e("s_cmp_lt_u32 s35, s30"); e("s_cbranch_scc1 G1_cloop")
    lab("G1_fin")
    if 'clk' in X:
        e("s_waitcnt vmcnt(0)")
        e("s_memtime s[66:67]"); e("s_memrealtime s[68:69]"); e("s_waitcnt lgkmcnt(0)")
        e("s_sub_u32 s66, s66, s60"); e("s_sub_u32 s80, s80, s60"); e("s_sub_u32 s82, s82, s60"); e("s_sub_u32 s84, s84, s60")
        srd(72, 64, 65, 256)
        e("v_mov_b32 v60, s80"); e("v_mov_b32 v61, s82"); e("v_mov_b32 v62, s84"); e("v_mov_b32 v63, s66"); e("v_mov_b32 v64, 0")
        e("s_cmp_lg_u32 s22, 0"); e("s_cbranch_scc1 G1_done")
        e("s_cmp_eq_u32 s2, 207"); e("s_cselect_b32 s70, 16, 0"); e("s_cbranch_scc1 G1_st")
        e("s_cmp_lg_u32 s2, 0"); e("s_cbranch_scc1 G1_done")
        lab("G1_st")
        e("buffer_store_dwordx4 v[60:63], v64, s[72:75], s70 offen")
    lab("G1_done"); e("s_endpgm")
    kdesc("g1_kernel", 208)

def gen_at():
    kstart("at_kernel")
    e("s_cmp_ge_u32 s2, 256"); e("s_cbranch_scc1 AT_done")
    e("s_load_dwordx2 s[18:19], s[0:1], 72")
    e("s_lshl_b32 s3, s2, 8"); e("v_add_u32 v1, s3, v0")
    e("v_lshrrev_b32 v2, 5, v1"); e("v_and_b32 v3, 31, v1")
    e("v_mul_u32_u24 v3, 40, v3")
    e("s_waitcnt lgkmcnt(0)")
    srd(8, 18, 19, QKV_SZ, QKV_OFF); srd(12, 18, 19, OH_SZ, OH_OFF)
    e("v_mul_u32_u24 v4, 3840, v2"); e("v_add_u32 v4, v4, v3")
    Q=10; K=20; L=100; V=140
    for i in range(5): e(f"buffer_load_dwordx2 v[{Q+2*i}:{Q+2*i+1}], v4, s[8:11], 0 offen offset:{8*i}")
    for w in range(8):
        e(f"v_subrev_u32 v5, {2*w}, v2"); e("v_max_i32 v5, 0, v5")
        e("v_mul_u32_u24 v5, 3840, v5"); e(f"v_add_u32 v{110+w}, v5, v3")
        for i in range(5):
            e(f"buffer_load_dwordx2 v[{K+10*w+2*i}:{K+10*w+2*i+1}], v{110+w}, s[8:11], 0 offen offset:{1280+8*i}")
    for w in range(8):
        for i in range(5):
            e(f"buffer_load_dwordx2 v[{V+10*w+2*i}:{V+10*w+2*i+1}], v{110+w}, s[8:11], 0 offen offset:{2560+8*i}")
    e("s_mov_b32 s20, 0x3e64f92e"); e("s_mov_b32 s21, 0xce6e0000")
    for w in range(8): e(f"v_mov_b32 v{L+w}, 0")
    e("s_waitcnt vmcnt(40)")
    for i in range(10):
        for w in range(8): e(f"v_dot2_f32_bf16 v{L+w}, v{Q+i}, v{K+10*w+i}, v{L+w}")
    e("v_mov_b32 v5, s21")
    for w in range(8):
        bf16r(f"v{L+w}", f"v{L+w}"); e(f"v_mul_f32 v{L+w}, s20, v{L+w}"); bf16r(f"v{L+w}", f"v{L+w}")
        if w:
            e(f"v_cmp_le_u32 vcc, {2*w}, v2"); e("s_nop 1")
            e(f"v_cndmask_b32 v{L+w}, v5, v{L+w}, vcc")
    e(f"v_max_f32 v5, v{L}, v{L+1}")
    for w in range(2,8): e(f"v_max_f32 v5, v5, v{L+w}")
    e("s_mov_b32 s22, 0x3fb8aa3b")
    e("v_mov_b32 v6, 0")
    for w in range(8):
        e(f"v_sub_f32 v{L+w}, v{L+w}, v5"); e(f"v_mul_f32 v{L+w}, s22, v{L+w}"); e(f"v_exp_f32 v{L+w}, v{L+w}")
    for w in range(8): e(f"v_add_f32 v6, v6, v{L+w}")
    e("v_rcp_f32 v6, v6"); e("s_nop 0")
    for w in range(8):
        e(f"v_mul_f32 v{L+w}, v{L+w}, v6"); bf16r(f"v{L+w}", f"v{L+w}")
    e("s_waitcnt vmcnt(0)")
    O=120
    for d in range(20): e(f"v_mov_b32 v{O+d}, 0")
    for w in range(8):
        for i in range(10):
            e(f"v_lshlrev_b32 v5, 16, v{V+10*w+i}"); e(f"v_fmac_f32 v{O+2*i}, v{L+w}, v5")
            e(f"v_and_b32 v7, 0xffff0000, v{V+10*w+i}"); e(f"v_fmac_f32 v{O+2*i+1}, v{L+w}, v7")
    for i in range(10): e(f"v_cvt_pk_bf16_f32 v{Q+i}, v{O+2*i}, v{O+2*i+1}")
    e("v_mul_u32_u24 v4, 4352, v2"); e("v_add_u32 v4, v4, v3")
    for i in range(5): e(f"buffer_store_dwordx2 v[{Q+2*i}:{Q+2*i+1}], v4, s[12:15], 0 offen offset:{8*i}")
    lab("AT_done"); e("s_endpgm")
    kdesc("at_kernel", 220)

def gen_g2():
    kstart("g2_kernel")
    WB = 40960; STG = 20480
    e("s_cmp_ge_u32 s2, 256"); e("s_cbranch_scc1 G2_done")
    e("s_load_dwordx2 s[4:5], s[0:1], 16")
    e("s_load_dwordx2 s[6:7], s[0:1], 48")
    e("s_load_dwordx2 s[16:17], s[0:1], 0")
    e("s_load_dwordx2 s[18:19], s[0:1], 72")
    e("s_load_dwordx2 s[40:41], s[0:1], 56")
    e("s_and_b32 s3, s2, 7"); e("s_lshr_b32 s20, s2, 3")
    e("s_lshr_b32 s21, s20, 3"); e("s_lshl_b32 s3, s3, 2"); e("s_add_u32 s21, s21, s3")
    e("s_and_b32 s20, s20, 7")
    e("v_lshrrev_b32 v1, 6, v0"); e("v_and_b32 v2, 63, v0"); e("s_nop 0")
    e("v_readfirstlane_b32 s22, v1")
    e("s_waitcnt lgkmcnt(0)")
    srd(8, 18, 19, OH_SZ, OH_OFF)
    e("s_cmp_eq_u32 s22, 0"); e("s_cselect_b32 s26, s4, s6"); e("s_cselect_b32 s27, s5, s7")
    e("s_mov_b32 s39, 1536*1280"); e("s_cselect_b32 s28, 640*1280, s39")
    e("s_mov_b32 s12, s26"); e("s_and_b32 s13, s27, 0xffff"); e("s_mov_b32 s14, s28"); e("s_mov_b32 s15, 0x00020000")
    e("s_sub_u32 s29, s22, 1"); e("s_lshl_b32 s29, s29, 9")
    e("s_cmp_eq_u32 s22, 0"); e("s_cselect_b32 s29, 0, s29")
    e("s_add_u32 s30, s29, 640"); e("s_cmp_eq_u32 s22, 0"); e("s_cselect_b32 s30, 0, s30")
    e("s_cselect_b32 s31, 5, 4")
    e("s_lshl_b32 s32, s30, 1")
    e("s_lshl_b32 s36, s21, 6"); e("s_mul_i32 s36, s36, 4352"); e("s_add_u32 s32, s32, s36")
    e("s_mul_i32 s33, s29, 1280")
    e("s_mul_i32 s37, s20, 160"); e("s_add_u32 s33, s33, s37")
    STG = 10240
    e("v_bfe_u32 v184, v2, 4, 2"); e("v_lshlrev_b32 v184, 1, v184"); e("v_mov_b32 v185, 0x78")
    e("v_lshrrev_b32 v184, v184, v185"); e("v_and_b32 v184, 3, v184")
    e("v_and_b32 v185, 3, v2"); e("v_xor_b32 v184, v184, v185")
    e("v_lshrrev_b32 v185, 2, v2"); e("v_mul_u32_u24 v185, 4352, v185"); e("v_lshl_add_u32 v4, v184, 4, v185")
    for q in range(6):
        e(f"v_add_u32 v20, {64*q}, v2")
        e("v_mul_u32_u24 v21, 43691, v20"); e("v_lshrrev_b32 v21, 19, v21")
        e("v_mul_u32_u24 v22, 12, v21"); e("v_sub_u32 v22, v20, v22")
        e("v_bfe_u32 v23, v21, 3, 1"); e("v_lshlrev_b32 v23, 1, v23"); e("v_xor_b32 v22, v22, v23")
        e("v_mul_u32_u24 v21, 1280, v21")
        e(f"v_lshl_add_u32 v{6+q}, v22, 4, v21")
    e("v_mul_u32_u24 v29, 40960, v1")
    e("v_and_b32 v184, 15, v2"); e("v_lshrrev_b32 v185, 4, v2")
    e("v_lshrrev_b32 v186, 2, v184"); e("v_lshlrev_b32 v186, 1, v186"); e("v_mov_b32 v187, 0x78")
    e("v_lshrrev_b32 v186, v186, v187"); e("v_and_b32 v186, 3, v186"); e("v_xor_b32 v186, v186, v185")
    e("v_lshl_add_u32 v187, v184, 6, v29")
    e("v_lshl_add_u32 v18, v186, 4, v187")
    e("v_lshrrev_b32 v186, 2, v184"); e("v_and_b32 v187, 3, v184")
    e("v_lshl_add_u32 v26, v185, 3, v186"); e("v_mul_u32_u24 v26, 192, v26")
    e("v_and_b32 v27, 1, v187"); e("v_lshl_add_u32 v26, v27, 3, v26"); e("v_add_u32 v26, v26, v29")
    for jb in range(5):
        e("v_lshrrev_b32 v28, 1, v187"); e(f"v_add_u32 v27, {2*jb}, v28")
        e("v_and_b32 v28, 1, v185"); e("v_lshlrev_b32 v28, 1, v28"); e("v_xor_b32 v27, v27, v28")
        e(f"v_lshl_add_u32 v{20+jb}, v27, 4, v26")
    ACC=32
    for i in range(80): e(f"v_mov_b32 v{ACC+i}, 0")
    XF=112; WF=144
    e("s_mul_i32 s34, s22, 40960")
    e("s_lshl_b32 s31, s31, 2")
    e("s_mov_b32 s42, s10"); e("s_mov_b32 s43, s14")
    e("s_mov_b32 s35, -4"); e("s_mov_b32 s36, 0"); e("s_sub_u32 s44, s31, 4"); e("s_mov_b32 s46, 0")
    def dma2():
        e("s_cmp_lt_i32 s35, s44"); e("s_cselect_b32 s10, s42, 0"); e("s_cselect_b32 s14, s43, 0")
        e("s_add_u32 s45, s34, s36"); e("s_mov_b32 s38, s32")
        for q in range(4):
            e("s_mov_b32 m0, s45"); e("s_add_u32 s45, s45, 1024")
            e(f"buffer_load_dwordx4 v4, s[8:11], s38 offen lds")
            if q < 3: e(f"s_add_u32 s38, s38, {16*4352}")
        for q in range(6):
            e("s_mov_b32 m0, s45"); e("s_add_u32 s45, s45, 1024")
            e(f"buffer_load_dwordx4 v{6+q}, s[12:15], s33 offen lds")
        e("s_add_u32 s32, s32, 64"); e("s_add_u32 s33, s33, 32*1280")
        e(f"s_add_u32 s36, s36, {STG}"); e(f"s_cmp_eq_u32 s36, {4*STG}"); e("s_cselect_b32 s36, 0, s36")
    def addrs2():
        e("v_add_u32 v25, s46, v18")
        for jb in range(5): e(f"v_add_u32 v{184+jb}, s46, v{20+jb}")
        e(f"s_add_u32 s46, s46, {STG}"); e(f"s_cmp_eq_u32 s46, {4*STG}"); e("s_cselect_b32 s46, 0, s46")
    def reads2(fs):
        xf = (112,192)[fs]; wf = (144,208)[fs]; L=[]
        for mb in range(4): L.append(f"ds_read_b128 v[{xf+mb*4}:{xf+mb*4+3}], v25 offset:{mb*1024}")
        for jb in range(5):
            for h in range(2):
                r_ = wf+jb*4+h*2
                L.append(f"ds_read_b64_tr_b16 v[{r_}:{r_+1}], v{184+jb} offset:{4096+h*768}")
        return L
    lab("G2_pro")
    dma2()
    e("s_add_u32 s35, s35, 1"); e("s_cmp_lt_i32 s35, 0"); e("s_cbranch_scc1 G2_pro")
    addrs2(); e("s_waitcnt vmcnt(30)")
    for r in reads2(0): e(r)
    lab("G2_loop")
    for fs in range(2):
        addrs2(); e("s_waitcnt vmcnt(20) lgkmcnt(0)")
        R = reads2(1-fs); k = 0; xf = (112,192)[fs]; wf = (144,208)[fs]
        for nb in range(5):
            for mb in range(4):
                a_ = ACC+(nb*4+mb)*4; w = wf+nb*4; x = xf+mb*4
                e(f"v_mfma_f32_16x16x32_bf16 v[{a_}:{a_+3}], v[{w}:{w+3}], v[{x}:{x+3}], v[{a_}:{a_+3}]")
                if k < 14 and mb != 3: e(R[k]); k += 1
        dma2()
        e("s_add_u32 s35, s35, 1")
    e("s_cmp_lt_i32 s35, s31"); e("s_cbranch_scc1 G2_loop")
    e("s_waitcnt lgkmcnt(0)")
    e("s_waitcnt vmcnt(0)"); e("s_nop 7")
    e("v_lshl_add_u32 v10, v2, 4, v29")
    for i in range(20): e(f"ds_write_b128 v10, v[{ACC+4*i}:{ACC+4*i+3}] offset:{i*1024}")
    srd(8, 16, 17, XN_SZ); srd(12, 40, 41, XN_SZ)
    e("v_and_b32 v11, 15, v2"); e("v_lshrrev_b32 v12, 4, v2")
    e("s_lshl_b32 s36, s21, 6"); e("s_lshl_b32 s37, s22, 4"); e("s_add_u32 s36, s36, s37")
    e("v_add_u32 v11, s36, v11"); e("v_mul_u32_u24 v11, 1280, v11")
    e("s_mul_i32 s37, s20, 80"); e("v_lshl_add_u32 v12, v12, 2, s37"); e("v_lshl_add_u32 v11, v12, 1, v11")
    e("v_lshlrev_b32 v10, 4, v2"); e("s_lshl_b32 s37, s22, 10"); e("v_add_u32 v10, s37, v10")
    e(f"v_add_u32 v13, {2*WB}, v10")
    e("s_mov_b32 s35, 0")
    e("s_waitcnt lgkmcnt(0)"); e("s_barrier")
    lab("G2_eloop")
    e("buffer_load_dwordx2 v[4:5], v11, s[8:11], 0 offen")
    e("ds_read_b128 v[32:35], v10"); e(f"ds_read_b128 v[36:39], v10 offset:{WB}")
    e("ds_read_b128 v[40:43], v13"); e(f"ds_read_b128 v[44:47], v13 offset:{WB}")
    e("v_add_u32 v10, 4096, v10"); e("v_add_u32 v13, 4096, v13")
    e("s_waitcnt vmcnt(0) lgkmcnt(0)")
    e("v_lshlrev_b32 v6, 16, v4"); e("v_and_b32 v7, 0xffff0000, v4")
    e("v_lshlrev_b32 v8, 16, v5"); e("v_and_b32 v9, 0xffff0000, v5")
    for j in range(4):
        e(f"v_add_f32 v{36+j}, v{36+j}, v{40+j}"); e(f"v_add_f32 v{36+j}, v{36+j}, v{44+j}")
        bf16r(f"v{36+j}", f"v{36+j}"); bf16r(f"v{32+j}", f"v{32+j}")
        e(f"v_add_f32 v{32+j}, v{6+j}, v{32+j}"); bf16r(f"v{32+j}", f"v{32+j}")
        e(f"v_add_f32 v{32+j}, v{32+j}, v{36+j}")
    e("v_cvt_pk_bf16_f32 v32, v32, v33"); e("v_cvt_pk_bf16_f32 v33, v34, v35")
    e("buffer_store_dwordx2 v[32:33], v11, s[12:15], 0 offen")
    e("v_add_u32 v11, 32, v11")
    e("s_add_u32 s35, s35, 1"); e("s_cmp_lt_u32 s35, 5"); e("s_cbranch_scc1 G2_eloop")
    lab("G2_done"); e("s_endpgm")
    kdesc("g2_kernel", 232)

HEAD = open("parallel_sum__sliding_local_dilated__glu_gated_swiglu__prompt.s.ref").read().split("; @launch")[0]
gen_ln(); gen_g1(); gen_at(); gen_g2()
txt = HEAD + """; @launch kernel=ln_kernel grid=(512,1,1) block=(256,1,1) lds=0
; @launch kernel=g1_kernel grid=(208,1,1) block=(512,1,1) lds=163840
; @launch kernel=at_kernel grid=(256,1,1) block=(256,1,1) lds=0
; @launch kernel=g2_kernel grid=(256,1,1) block=(256,1,1) lds=163840
.amdgcn_target "amdgcn-amd-amdhsa--gfx950"
.text
""" + "\n".join(OUT) + '\n.section .rodata,"a"\n' + "\n".join(DESCS) + "\n"
open(os.environ.get("GO","parallel_sum__sliding_local_dilated__glu_gated_swiglu__prompt.s"), "w").write(txt)
```

```python
import sys, os
X=os.environ.get("GX","")
OUT = []
def e(s): OUT.append("    " + s)
def lab(s): OUT.append(s + ":")
def c(s): OUT.append("    ; " + s)

XN_OFF  = 0x0
QKV_OFF = 0x300000
OH_OFF  = 0xB00000
XN_SZ, QKV_SZ, OH_SZ = 2048*1280, 2048*3840, 2048*4352

def srd(d, lo, hi, size, add=0):
    if add:
        e(f"s_add_u32 s{d}, s{lo}, {add:#x}")
        e(f"s_addc_u32 s{d+1}, s{hi}, 0")
    else:
        e(f"s_mov_b32 s{d}, s{lo}")
        e(f"s_mov_b32 s{d+1}, s{hi}")
    e(f"s_and_b32 s{d+1}, s{d+1}, 0xffff")
    e(f"s_mov_b32 s{d+2}, {size:#x}")
    e(f"s_mov_b32 s{d+3}, 0x00020000")

def kstart(name):
    OUT.append(f".globl {name}\n.p2align 8\n.type {name},@function\n{name}:")

DESCS = []
def kdesc(name, vgpr, sgpr=96):
    acc = ((vgpr + 3)//4)*4
    DESCS.append(f""".p2align 6
.amdhsa_kernel {name}
  .amdhsa_next_free_vgpr {vgpr}
  .amdhsa_next_free_sgpr {sgpr}
  .amdhsa_accum_offset {acc}
  .amdhsa_group_segment_fixed_size 0
  .amdhsa_kernarg_size 80
  .amdhsa_user_sgpr_count 2
  .amdhsa_user_sgpr_kernarg_segment_ptr 1
  .amdhsa_system_sgpr_workgroup_id_x 1
.end_amdhsa_kernel""")

def bf16r(dst, src):
    e(f"v_cvt_pk_bf16_f32 {dst}, {src}, {src}")
    e(f"v_lshlrev_b32 {dst}, 16, {dst}")

def wave_sum(v, tmp, sdst):
    for m in (1,2,4,8,16):
        e(f"ds_swizzle_b32 {tmp}, {v} offset:{(m<<10)|0x1f:#x}")
        e("s_waitcnt lgkmcnt(0)")
        e(f"v_add_f32 {v}, {v}, {tmp}")
    e("s_nop 1")
    e(f"v_readlane_b32 {sdst}, {v}, 32")
    e("s_nop 3")
    e(f"v_add_f32 {v}, {sdst}, {v}")
    e("s_nop 1")
    e(f"v_readlane_b32 {sdst}, {v}, 0")
    e("s_nop 3")

def gen_ln():
    kstart("ln_kernel")
    e("s_cmp_ge_u32 s2, 512"); e("s_cbranch_scc1 LN_done")
    e("s_load_dwordx2 s[4:5], s[0:1], 0")
    e("s_load_dwordx2 s[6:7], s[0:1], 72")
    e("s_load_dwordx4 s[24:27], s[0:1], 8")
    e("s_load_dwordx4 s[28:31], s[0:1], 32")
    e("s_load_dwordx2 s[32:33], s[0:1], 48")
    e("v_lshrrev_b32 v1, 6, v0")
    e("v_and_b32 v2, 63, v0")
    e("s_lshl_b32 s3, s2, 2")
    e("v_add_u32 v1, s3, v1")
    e("v_mul_u32_u24 v1, 1280, v1")
    e("v_lshl_add_u32 v3, v2, 4, v1")
    e("v_lshl_add_u32 v4, v2, 2, v1")
    e("v_add_u32 v4, 1024, v4")
    e("s_waitcnt lgkmcnt(0)")
    srd(8, 4, 5, XN_SZ)
    srd(12, 6, 7, XN_SZ, XN_OFF)
    e("buffer_load_dwordx4 v[8:11], v3, s[8:11], 0 offen")
    e("buffer_load_dword v12, v4, s[8:11], 0 offen")
    e("v_lshlrev_b32 v39, 4, v0")
    for k,(lo,sz) in enumerate(((24,640*3840),(26,640*1280),(28,640*3072),(30,640*3072),(32,1536*1280))):
        srd(36, lo, lo+1, sz)
        e(f"s_mul_i32 s34, s2, {sz//512}")
        e(f"buffer_load_dwordx4 v[{40+8*k}:{43+8*k}], v39, s[36:39], s34 offen")
        if sz//512 > 4096: e(f"buffer_load_dwordx4 v[{44+8*k}:{47+8*k}], v39, s[36:39], s34 offen offset:4080")
    e("s_waitcnt vmcnt(6)")
    for i in range(5):
        e(f"v_lshlrev_b32 v{16+2*i}, 16, v{8+i}")
        e(f"v_and_b32 v{17+2*i}, 0xffff0000, v{8+i}")
    e("v_add_f32 v30, v16, v17")
    for i in range(2,10): e(f"v_add_f32 v30, v30, v{16+i}")
    wave_sum("v30", "v31", "s20")
    e("v_mov_b32 v32, 0x3acccccd")
    e("v_mul_f32 v33, s20, v32")
    e("v_sub_f32 v34, v16, v33"); e("v_mul_f32 v30, v34, v34")
    for i in range(1,10):
        e(f"v_sub_f32 v34, v{16+i}, v33"); e("v_fmac_f32 v30, v34, v34")
    wave_sum("v30", "v31", "s20")
    e("v_mul_f32 v35, s20, v32")
    bf16r("v33", "v33"); bf16r("v35", "v35")
    e("v_add_f32 v35, 0x3727c5ac, v35")
    bf16r("v35", "v35")
    e("v_sqrt_f32 v35, v35"); e("s_nop 0")
    bf16r("v35", "v35")
    e("v_rcp_f32 v36, v35"); e("s_nop 0")
    for i in range(10):
        e(f"v_sub_f32 v{16+i}, v{16+i}, v33")
        bf16r(f"v{16+i}", f"v{16+i}")
        e(f"v_mul_f32 v37, v{16+i}, v36")
        e(f"v_fma_f32 v38, -v37, v35, v{16+i}")
        e(f"v_fma_f32 v{16+i}, v38, v36, v37")
    for i in range(5):
        e(f"v_cvt_pk_bf16_f32 v{8+i}, v{16+2*i}, v{17+2*i}")
    e("buffer_store_dwordx4 v[8:11], v3, s[12:15], 0 offen")
    e("buffer_store_dword v12, v4, s[12:15], 0 offen")
    lab("LN_done"); e("s_endpgm")
    kdesc("ln_kernel", 88)

def gen_g1():
    kstart("g1_kernel")
    STG = 28672; NB = 5; NT = 20
    e("s_cmp_ge_u32 s2, 208"); e("s_cbranch_scc1 G1_done")
    if 'clk' in X:
        e("s_memtime s[60:61]"); e("s_memrealtime s[62:63]"); e("s_load_dwordx2 s[64:65], s[0:1], 64")
    e("s_load_dwordx2 s[4:5], s[0:1], 8")
    e("s_load_dwordx2 s[6:7], s[0:1], 32")
    e("s_load_dwordx2 s[16:17], s[0:1], 40")
    e("s_load_dwordx2 s[18:19], s[0:1], 72")
    e("s_and_b32 s3, s2, 7"); e("s_mul_i32 s3, s3, 26"); e("s_lshr_b32 s20, s2, 3"); e("s_add_u32 s3, s3, s20")
    e("s_lshr_b32 s20, s3, 3")
    e("s_and_b32 s21, s3, 7")
    e("v_lshrrev_b32 v1, 6, v0"); e("v_and_b32 v2, 63, v0"); e("s_nop 0")
    e("v_readfirstlane_b32 s22, v1")
    e("s_waitcnt lgkmcnt(0)")
    srd(8, 18, 19, XN_SZ, XN_OFF)
    e("s_cmp_ge_u32 s22, 3"); e("s_cselect_b32 s23, 1, 0")
    e("s_cmp_lt_u32 s20, 10"); e("s_cbranch_scc1 G1_qkvsetup")
    e("s_sub_u32 s24, s20, 10"); e("s_mul_i32 s24, s24, 192")
    e("s_cmp_eq_u32 s23, 0"); e("s_cselect_b32 s26, s6, s16"); e("s_cselect_b32 s27, s7, s17")
    e("s_mov_b32 s25, 3072")
    srd(12, 26, 27, 640*3072)
    e("s_branch G1_setup2")
    lab("G1_qkvsetup")
    e("s_mul_i32 s24, s20, 384"); e("s_mul_i32 s25, s23, 192"); e("s_add_u32 s24, s24, s25")
    e("s_mov_b32 s25, 3840")
    srd(12, 4, 5, 640*3840)
    lab("G1_setup2")
    e("s_lshl_b32 s28, s21, 8")
    e("s_mov_b32 s38, s10"); e("s_mov_b32 s39, s14")
    e("v_bfe_u32 v10, v2, 4, 2"); e("v_lshlrev_b32 v10, 1, v10"); e("v_mov_b32 v11, 0x78")
    e("v_lshrrev_b32 v10, v10, v11"); e("v_and_b32 v10, 3, v10")
    e("v_and_b32 v11, 3, v2"); e("v_xor_b32 v10, v10, v11")
    e("v_lshrrev_b32 v11, 2, v2"); e("v_lshl_add_u32 v11, v1, 5, v11"); e("v_add_u32 v11, s28, v11")
    e("v_mul_u32_u24 v11, 1280, v11"); e("v_lshl_add_u32 v4, v10, 4, v11")
    e("v_add_u32 v5, 20480, v4")
    e("s_lshl_b32 s29, s22, 1"); e("s_add_u32 s30, s22, 4"); e("s_cmp_lt_u32 s22, 4"); e("s_cselect_b32 s29, s29, s30")
    e("s_cmp_ge_u32 s29, 6"); e("s_cselect_b32 s30, 6, 0"); e("s_sub_u32 s30, s29, s30")
    e("s_lshl_b32 s30, s30, 6")
    for i in range(2):
        e(f"v_add_u32 v11, s30, v2")
        if i: e("v_add_u32 v11, 64, v11")
        e("v_mul_u32_u24 v12, 43691, v11"); e("v_lshrrev_b32 v12, 19, v12")
        e("v_mul_u32_u24 v13, 12, v12"); e("v_sub_u32 v13, v11, v13")
        e("v_bfe_u32 v17, v12, 3, 1"); e("v_lshlrev_b32 v17, 1, v17"); e("v_xor_b32 v13, v13, v17")
        e("v_mul_lo_u32 v12, v12, s25")
        e("v_lshl_add_u32 v12, v13, 4, v12")
        e(f"v_add_u32 v{6+i}, s24, v12")
    e("v_and_b32 v10, 15, v2"); e("v_lshrrev_b32 v11, 4, v2")
    e("v_lshrrev_b32 v12, 2, v10"); e("v_lshlrev_b32 v12, 1, v12"); e("v_mov_b32 v13, 0x78")
    e("v_lshrrev_b32 v12, v12, v13"); e("v_and_b32 v12, 3, v12"); e("v_xor_b32 v12, v12, v11")
    e("v_and_b32 v13, 3, v1"); e("v_lshlrev_b32 v13, 12, v13")
    e("v_lshl_add_u32 v13, v10, 6, v13")
    e("v_lshl_add_u32 v18, v12, 4, v13")
    e("v_lshrrev_b32 v12, 2, v10"); e("v_and_b32 v13, 3, v10")
    e("v_lshrrev_b32 v17, 2, v1")
    e("v_lshl_add_u32 v26, v11, 3, v12"); e("v_mul_u32_u24 v26, 192, v26")
    e("v_and_b32 v27, 1, v13"); e("v_lshl_add_u32 v26, v27, 3, v26")
    e("v_mul_u32_u24 v27, 6, v17"); e("v_lshrrev_b32 v28, 1, v13"); e("v_add_u32 v27, v27, v28")
    e("v_and_b32 v28, 1, v11"); e("v_lshlrev_b32 v28, 1, v28")
    for jb in range(3):
        e(f"v_add_u32 v29, {2*jb}, v27"); e("v_xor_b32 v29, v29, v28")
        e(f"v_lshl_add_u32 v{19+jb}, v29, 4, v26")
    ACC = 32
    for i in range(96): e(f"v_mov_b32 v{ACC+i}, 0")
    XF = 128; WF = 144
    e("s_lshl_b32 s30, s22, 11")
    e("s_lshl_b32 s31, s29, 10"); e("s_add_u32 s31, s31, 16384")
    e("s_mov_b32 s32, 0"); e("s_mov_b32 s33, 0"); e("s_lshl_b32 s34, s25, 5")
    cnt=[0]
    def dma():
        cnt[0]+=1
        e("s_cmp_lt_i32 s35, 16"); e("s_cselect_b32 s10, s38, 0"); e("s_cselect_b32 s14, s39, 0")
        e("s_add_u32 s40, s30, s36"); e("s_add_u32 s41, s31, s36")
        e("s_mov_b32 m0, s40"); e("s_add_u32 s40, s40, 1024")
        e("buffer_load_dwordx4 v4, s[8:11], s32 offen lds")
        e("s_mov_b32 m0, s40"); e("s_nop 0")
        e("buffer_load_dwordx4 v5, s[8:11], s32 offen lds")
        e("s_mov_b32 m0, s41"); e("s_add_u32 s41, s41, 1024")
        e("buffer_load_dwordx4 v6, s[12:15], s33 offen lds")
        e("s_cmp_ge_u32 s22, 4"); e(f"s_cbranch_scc1 G1_sk{cnt[0]}")
        e("s_mov_b32 m0, s41"); e("s_nop 0")
        e("buffer_load_dwordx4 v7, s[12:15], s33 offen lds")
        lab(f"G1_sk{cnt[0]}")
        e("s_add_u32 s32, s32, 64"); e("s_add_u32 s33, s33, s34")
        e(f"s_add_u32 s36, s36, {STG}"); e(f"s_cmp_eq_u32 s36, {NB*STG}"); e("s_cselect_b32 s36, 0, s36")
    def waitv(k):
        cnt[0]+=1
        e("s_cmp_ge_u32 s22, 4"); e(f"s_cbranch_scc1 G1_wa{cnt[0]}")
        e(f"s_waitcnt vmcnt({4*k})"); e(f"s_branch G1_wb{cnt[0]}")
        lab(f"G1_wa{cnt[0]}"); e(f"s_waitcnt vmcnt({3*k})"); lab(f"G1_wb{cnt[0]}")
    def addrs():
        e("v_add_u32 v22, s37, v18"); e("v_add_u32 v23, s37, v19"); e("v_add_u32 v24, s37, v20"); e("v_add_u32 v25, s37, v21")
        e(f"s_add_u32 s37, s37, {STG}"); e(f"s_cmp_eq_u32 s37, {NB*STG}"); e("s_cselect_b32 s37, 0, s37")
    def reads(fs):
        L=[]
        xf = XF+40*fs; wf = WF+40*fs
        for mb in range(4): L.append(f"ds_read_b128 v[{xf+mb*4}:{xf+mb*4+3}], v22 offset:{mb*1024}")
        for s_ in range(2):
            for jb in range(3):
                for h in range(2):
                    r_ = wf + (s_*3+jb)*4 + h*2
                    L.append(f"ds_read_b64_tr_b16 v[{r_}:{r_+1}], v{23+jb} offset:{16384+s_*6144+h*768}")
        return L
    e("s_mov_b32 s35, -4"); e("s_mov_b32 s36, 0"); e("s_mov_b32 s37, 0")
    lab("G1_pro")
    dma()
    e("s_add_u32 s35, s35, 1"); e("s_cmp_lt_i32 s35, 0"); e("s_cbranch_scc1 G1_pro")
    waitv(3); addrs(); e("s_barrier")
    for r in reads(0): e(r)
    if 'clk' in X: e("s_memtime s[80:81]")
    lab("G1_loop")
    for fs in range(2):
        waitv(2); addrs(); e("s_barrier")
        dma()
        e("s_waitcnt lgkmcnt(0)")
        R = reads(1-fs); k = 0
        xf = XF+40*fs; wf = WF+40*fs
        for nb in range(6):
            for mb in range(4):
                a_ = ACC + (nb*4+mb)*4; w = wf+nb*4; x = xf+mb*4
                e(f"v_mfma_f32_16x16x32_bf16 v[{a_}:{a_+3}], v[{w}:{w+3}], v[{x}:{x+3}], v[{a_}:{a_+3}]")
                if k < 16 and (nb*4+mb) % 4 != 3: e(R[k]); k += 1
        e("s_add_u32 s35, s35, 1")
    e(f"s_cmp_lt_i32 s35, {NT}"); e("s_cbranch_scc1 G1_loop")
    e("s_waitcnt lgkmcnt(0)")
    if 'clk' in X: e("s_memtime s[82:83]")
    e("s_waitcnt vmcnt(0)")
    e("s_barrier")
    e("v_and_b32 v10, 15, v2"); e("v_lshrrev_b32 v11, 4, v2")
    e("v_and_b32 v12, 3, v1"); e("v_lshl_add_u32 v10, v12, 6, v10"); e("v_add_u32 v10, s28, v10")
    e("v_lshrrev_b32 v12, 2, v1"); e("v_mul_u32_u24 v12, 48, v12"); e("v_lshl_add_u32 v11, v11, 2, v12")
    for i in range(24):
        g = ACC + 4*i
        e(f"v_cvt_pk_bf16_f32 v{128+2*i}, v{g}, v{g+1}"); e(f"v_cvt_pk_bf16_f32 v{129+2*i}, v{g+2}, v{g+3}")
    e("v_subrev_u32 v10, s28, v10")
    TB = 98304
    e("s_cmp_lt_u32 s20, 10"); e("s_cbranch_scc1 G1_epq")
    srd(8, 18, 19, OH_SZ, OH_OFF)
    e("s_sub_u32 s24, s20, 10"); e("s_mul_i32 s24, s24, 192"); e("s_add_u32 s24, s24, 1280")
    e("s_mul_i32 s25, s28, 4352"); e("s_add_u32 s24, s24, s25")
    e("s_mov_b32 s25, 4352"); e("s_mov_b32 s26, 5462"); e("s_mov_b32 s27, 12"); e("s_mov_b32 s29, 208"); e("s_mov_b32 s30, 6")
    e("v_mul_u32_u24 v10, 208, v10"); e("v_lshl_add_u32 v10, v11, 1, v10"); e(f"v_add_u32 v10, {TB}, v10")
    e("v_mul_u32_u24 v12, 12288, v1"); e("v_lshl_add_u32 v12, v2, 3, v12")
    for i in range(24): e(f"ds_write_b64 v12, v[{128+2*i}:{129+2*i}] offset:{i*512}")
    e("s_mov_b32 s36, 0xbfb8aa3b"); e("s_mov_b32 s35, 0")
    e("s_waitcnt lgkmcnt(0)")
    lab("G1_eloop")
    e("ds_read_b64 v[32:33], v12"); e("ds_read_b64 v[34:35], v12 offset:6144")
    e("v_add_u32 v12, 512, v12")
    e("s_waitcnt lgkmcnt(0)")
    for j in range(4):
        src = 32 + (j>>1); usrc = 34 + (j>>1)
        if j&1: e(f"v_and_b32 v{40+j}, 0xffff0000, v{src}"); e(f"v_and_b32 v{44+j}, 0xffff0000, v{usrc}")
        else:   e(f"v_lshlrev_b32 v{40+j}, 16, v{src}"); e(f"v_lshlrev_b32 v{44+j}, 16, v{usrc}")
    for j in range(4): e(f"v_mul_f32 v{48+j}, s36, v{40+j}")
    for j in range(4): e(f"v_exp_f32 v{48+j}, v{48+j}")
    for j in range(4): e(f"v_add_f32 v{48+j}, 1.0, v{48+j}")
    for j in range(4): e(f"v_rcp_f32 v{48+j}, v{48+j}")
    for j in range(4): e(f"v_mul_f32 v{48+j}, v{40+j}, v{48+j}")
    for j in range(4): bf16r(f"v{48+j}", f"v{48+j}")
    for j in range(4): e(f"v_mul_f32 v{48+j}, v{48+j}, v{44+j}")
    e("v_cvt_pk_bf16_f32 v36, v48, v49"); e("v_cvt_pk_bf16_f32 v37, v50, v51")
    e("ds_write_b64 v10, v[36:37]")
    e("s_add_u32 s35, s35, 1")
    e("s_and_b32 s38, s35, 3"); e(f"s_mov_b32 s39, {-16*208}"); e("s_cmp_eq_u32 s38, 0"); e(f"s_cselect_b32 s38, {48*208-32}, s39"); e("v_subrev_u32 v10, s38, v10")
    e("s_cmp_lt_u32 s35, 12"); e("s_cbranch_scc1 G1_eloop")
    e("s_branch G1_copy")
    lab("G1_epq")
    srd(8, 18, 19, QKV_SZ, QKV_OFF)
    e("s_mul_i32 s24, s20, 384"); e("s_mul_i32 s25, s28, 3840"); e("s_add_u32 s24, s24, s25")
    e("s_mov_b32 s25, 3840"); e("s_mov_b32 s26, 2731"); e("s_mov_b32 s27, 24"); e("s_mov_b32 s29, 400"); e("s_mov_b32 s30, 12")
    e("v_mul_u32_u24 v10, 400, v10"); e("v_lshl_add_u32 v10, v11, 1, v10"); e(f"v_add_u32 v10, {TB-102400+61440}, v10")
    for mb in range(4):
        for nb in range(6):
            i = nb*4+mb
            e(f"ds_write_b64 v10, v[{128+2*i}:{129+2*i}] offset:{mb*6400+(nb//3)*192+(nb%3)*32}")
    lab("G1_copy")
    if 'clk' in X: e("s_memtime s[84:85]")
    e(f"s_mov_b32 s39, {TB}"); e("s_cmp_lt_u32 s20, 10"); e(f"s_cselect_b32 s31, {TB-102400+61440}, s39")
    e("s_waitcnt lgkmcnt(0)"); e("s_barrier")
    e("s_mov_b32 s35, 0")
    lab("G1_cloop")
    e("v_mul_lo_u32 v10, v0, s26"); e("v_lshrrev_b32 v10, 16, v10")
    e("v_mul_lo_u32 v11, v10, s27"); e("v_sub_u32 v11, v0, v11")
    e("v_mul_lo_u32 v12, v10, s29"); e("v_lshl_add_u32 v12, v11, 4, v12"); e("v_add_u32 v12, s31, v12")
    e("ds_read_b128 v[32:35], v12")
    e("v_mul_lo_u32 v13, v10, s25"); e("v_lshl_add_u32 v13, v11, 4, v13")
    e("v_add_u32 v0, 512, v0")
    e("s_waitcnt lgkmcnt(0)")
    e("buffer_store_dwordx4 v[32:35], v13, s[8:11], s24 offen")
    e("s_add_u32 s35, s35, 1"); e("s_cmp_lt_u32 s35, s30"); e("s_cbranch_scc1 G1_cloop")
    lab("G1_fin")
    if 'clk' in X:
        e("s_waitcnt vmcnt(0)")
        e("s_memtime s[66:67]"); e("s_memrealtime s[68:69]"); e("s_waitcnt lgkmcnt(0)")
        e("s_sub_u32 s66, s66, s60"); e("s_sub_u32 s80, s80, s60"); e("s_sub_u32 s82, s82, s60"); e("s_sub_u32 s84, s84, s60")
        srd(72, 64, 65, 256)
        e("v_mov_b32 v60, s80"); e("v_mov_b32 v61, s82"); e("v_mov_b32 v62, s84"); e("v_mov_b32 v63, s66"); e("v_mov_b32 v64, 0")
        e("s_cmp_lg_u32 s22, 0"); e("s_cbranch_scc1 G1_done")
        e("s_cmp_eq_u32 s2, 207"); e("s_cselect_b32 s70, 16, 0"); e("s_cbranch_scc1 G1_st")
        e("s_cmp_lg_u32 s2, 0"); e("s_cbranch_scc1 G1_done")
        lab("G1_st")
        e("buffer_store_dwordx4 v[60:63], v64, s[72:75], s70 offen")
    lab("G1_done"); e("s_endpgm")
    kdesc("g1_kernel", 208)

def gen_at():
    kstart("at_kernel")
    e("s_cmp_ge_u32 s2, 256"); e("s_cbranch_scc1 AT_done")
    e("s_load_dwordx2 s[18:19], s[0:1], 72")
    e("s_lshl_b32 s3, s2, 8"); e("v_add_u32 v1, s3, v0")
    e("v_lshrrev_b32 v2, 5, v1"); e("v_and_b32 v3, 31, v1")
    e("v_mul_u32_u24 v3, 40, v3")
    e("s_waitcnt lgkmcnt(0)")
    srd(8, 18, 19, QKV_SZ, QKV_OFF); srd(12, 18, 19, OH_SZ, OH_OFF)
    e("v_mul_u32_u24 v4, 3840, v2"); e("v_add_u32 v4, v4, v3")
    Q=10; K=20; L=100; V=140
    for i in range(5): e(f"buffer_load_dwordx2 v[{Q+2*i}:{Q+2*i+1}], v4, s[8:11], 0 offen offset:{8*i}")
    for w in range(8):
        e(f"v_subrev_u32 v5, {2*w}, v2"); e("v_max_i32 v5, 0, v5")
        e("v_mul_u32_u24 v5, 3840, v5"); e(f"v_add_u32 v{110+w}, v5, v3")
        for i in range(5):
            e(f"buffer_load_dwordx2 v[{K+10*w+2*i}:{K+10*w+2*i+1}], v{110+w}, s[8:11], 0 offen offset:{1280+8*i}")
    for w in range(8):
        for i in range(5):
            e(f"buffer_load_dwordx2 v[{V+10*w+2*i}:{V+10*w+2*i+1}], v{110+w}, s[8:11], 0 offen offset:{2560+8*i}")
    e("s_mov_b32 s20, 0x3e64f92e"); e("s_mov_b32 s21, 0xce6e0000")
    for w in range(8): e(f"v_mov_b32 v{L+w}, 0")
    e("s_waitcnt vmcnt(40)")
    for i in range(10):
        for w in range(8): e(f"v_dot2_f32_bf16 v{L+w}, v{Q+i}, v{K+10*w+i}, v{L+w}")
    e("v_mov_b32 v5, s21")
    for w in range(8):
        bf16r(f"v{L+w}", f"v{L+w}"); e(f"v_mul_f32 v{L+w}, s20, v{L+w}"); bf16r(f"v{L+w}", f"v{L+w}")
        if w:
            e(f"v_cmp_le_u32 vcc, {2*w}, v2"); e("s_nop 1")
            e(f"v_cndmask_b32 v{L+w}, v5, v{L+w}, vcc")
    e(f"v_max_f32 v5, v{L}, v{L+1}")
    for w in range(2,8): e(f"v_max_f32 v5, v5, v{L+w}")
    e("s_mov_b32 s22, 0x3fb8aa3b")
    e("v_mov_b32 v6, 0")
    for w in range(8):
        e(f"v_sub_f32 v{L+w}, v{L+w}, v5"); e(f"v_mul_f32 v{L+w}, s22, v{L+w}"); e(f"v_exp_f32 v{L+w}, v{L+w}")
    for w in range(8): e(f"v_add_f32 v6, v6, v{L+w}")
    e("v_rcp_f32 v6, v6"); e("s_nop 0")
    for w in range(8):
        e(f"v_mul_f32 v{L+w}, v{L+w}, v6"); bf16r(f"v{L+w}", f"v{L+w}")
    e("s_waitcnt vmcnt(0)")
    O=120
    for d in range(20): e(f"v_mov_b32 v{O+d}, 0")
    for w in range(8):
        for i in range(10):
            e(f"v_lshlrev_b32 v5, 16, v{V+10*w+i}"); e(f"v_fmac_f32 v{O+2*i}, v{L+w}, v5")
            e(f"v_and_b32 v7, 0xffff0000, v{V+10*w+i}"); e(f"v_fmac_f32 v{O+2*i+1}, v{L+w}, v7")
    for i in range(10): e(f"v_cvt_pk_bf16_f32 v{Q+i}, v{O+2*i}, v{O+2*i+1}")
    e("v_mul_u32_u24 v4, 4352, v2"); e("v_add_u32 v4, v4, v3")
    for i in range(5): e(f"buffer_store_dwordx2 v[{Q+2*i}:{Q+2*i+1}], v4, s[12:15], 0 offen offset:{8*i}")
    lab("AT_done"); e("s_endpgm")
    kdesc("at_kernel", 220)

def gen_g2():
    kstart("g2_kernel")
    WB = 40960; STG = 20480
    e("s_cmp_ge_u32 s2, 256"); e("s_cbranch_scc1 G2_done")
    e("s_load_dwordx2 s[4:5], s[0:1], 16")
    e("s_load_dwordx2 s[6:7], s[0:1], 48")
    e("s_load_dwordx2 s[16:17], s[0:1], 0")
    e("s_load_dwordx2 s[18:19], s[0:1], 72")
    e("s_load_dwordx2 s[40:41], s[0:1], 56")
    e("s_and_b32 s3, s2, 7"); e("s_lshr_b32 s20, s2, 3")
    e("s_lshr_b32 s21, s20, 3"); e("s_lshl_b32 s3, s3, 2"); e("s_add_u32 s21, s21, s3")
    e("s_and_b32 s20, s20, 7")
    e("v_lshrrev_b32 v1, 6, v0"); e("v_and_b32 v2, 63, v0"); e("s_nop 0")
    e("v_readfirstlane_b32 s22, v1")
    e("s_waitcnt lgkmcnt(0)")
    srd(8, 18, 19, OH_SZ, OH_OFF)
    e("s_cmp_eq_u32 s22, 0"); e("s_cselect_b32 s26, s4, s6"); e("s_cselect_b32 s27, s5, s7")
    e("s_mov_b32 s39, 1536*1280"); e("s_cselect_b32 s28, 640*1280, s39")
    e("s_mov_b32 s12, s26"); e("s_and_b32 s13, s27, 0xffff"); e("s_mov_b32 s14, s28"); e("s_mov_b32 s15, 0x00020000")
    e("s_sub_u32 s29, s22, 1"); e("s_lshl_b32 s29, s29, 9")
    e("s_cmp_eq_u32 s22, 0"); e("s_cselect_b32 s29, 0, s29")
    e("s_add_u32 s30, s29, 640"); e("s_cmp_eq_u32 s22, 0"); e("s_cselect_b32 s30, 0, s30")
    e("s_cselect_b32 s31, 5, 4")
    e("s_lshl_b32 s32, s30, 1")
    e("s_lshl_b32 s36, s21, 6"); e("s_mul_i32 s36, s36, 4352"); e("s_add_u32 s32, s32, s36")
    e("s_mul_i32 s33, s29, 1280")
    e("s_mul_i32 s37, s20, 160"); e("s_add_u32 s33, s33, s37")
    STG = 10240
    e("v_bfe_u32 v184, v2, 4, 2"); e("v_lshlrev_b32 v184, 1, v184"); e("v_mov_b32 v185, 0x78")
    e("v_lshrrev_b32 v184, v184, v185"); e("v_and_b32 v184, 3, v184")
    e("v_and_b32 v185, 3, v2"); e("v_xor_b32 v184, v184, v185")
    e("v_lshrrev_b32 v185, 2, v2"); e("v_mul_u32_u24 v185, 4352, v185"); e("v_lshl_add_u32 v4, v184, 4, v185")
    for q in range(6):
        e(f"v_add_u32 v20, {64*q}, v2")
        e("v_mul_u32_u24 v21, 43691, v20"); e("v_lshrrev_b32 v21, 19, v21")
        e("v_mul_u32_u24 v22, 12, v21"); e("v_sub_u32 v22, v20, v22")
        e("v_bfe_u32 v23, v21, 3, 1"); e("v_lshlrev_b32 v23, 1, v23"); e("v_xor_b32 v22, v22, v23")
        e("v_mul_u32_u24 v21, 1280, v21")
        e(f"v_lshl_add_u32 v{6+q}, v22, 4, v21")
    e("v_mul_u32_u24 v29, 40960, v1")
    e("v_and_b32 v184, 15, v2"); e("v_lshrrev_b32 v185, 4, v2")
    e("v_lshrrev_b32 v186, 2, v184"); e("v_lshlrev_b32 v186, 1, v186"); e("v_mov_b32 v187, 0x78")
    e("v_lshrrev_b32 v186, v186, v187"); e("v_and_b32 v186, 3, v186"); e("v_xor_b32 v186, v186, v185")
    e("v_lshl_add_u32 v187, v184, 6, v29")
    e("v_lshl_add_u32 v18, v186, 4, v187")
    e("v_lshrrev_b32 v186, 2, v184"); e("v_and_b32 v187, 3, v184")
    e("v_lshl_add_u32 v26, v185, 3, v186"); e("v_mul_u32_u24 v26, 192, v26")
    e("v_and_b32 v27, 1, v187"); e("v_lshl_add_u32 v26, v27, 3, v26"); e("v_add_u32 v26, v26, v29")
    for jb in range(5):
        e("v_lshrrev_b32 v28, 1, v187"); e(f"v_add_u32 v27, {2*jb}, v28")
        e("v_and_b32 v28, 1, v185"); e("v_lshlrev_b32 v28, 1, v28"); e("v_xor_b32 v27, v27, v28")
        e(f"v_lshl_add_u32 v{20+jb}, v27, 4, v26")
    ACC=32
    for i in range(80): e(f"v_mov_b32 v{ACC+i}, 0")
    XF=112; WF=144
    e("s_mul_i32 s34, s22, 40960")
    e("s_lshl_b32 s31, s31, 2")
    e("s_mov_b32 s42, s10"); e("s_mov_b32 s43, s14")
    e("s_mov_b32 s35, -4"); e("s_mov_b32 s36, 0"); e("s_sub_u32 s44, s31, 4"); e("s_mov_b32 s46, 0")
    def dma2():
        e("s_cmp_lt_i32 s35, s44"); e("s_cselect_b32 s10, s42, 0"); e("s_cselect_b32 s14, s43, 0")
        e("s_add_u32 s45, s34, s36"); e("s_mov_b32 s38, s32")
        for q in range(4):
            e("s_mov_b32 m0, s45"); e("s_add_u32 s45, s45, 1024")
            e(f"buffer_load_dwordx4 v4, s[8:11], s38 offen lds")
            if q < 3: e(f"s_add_u32 s38, s38, {16*4352}")
        for q in range(6):
            e("s_mov_b32 m0, s45"); e("s_add_u32 s45, s45, 1024")
            e(f"buffer_load_dwordx4 v{6+q}, s[12:15], s33 offen lds")
        e("s_add_u32 s32, s32, 64"); e("s_add_u32 s33, s33, 32*1280")
        e(f"s_add_u32 s36, s36, {STG}"); e(f"s_cmp_eq_u32 s36, {4*STG}"); e("s_cselect_b32 s36, 0, s36")
    def addrs2():
        e("v_add_u32 v25, s46, v18")
        for jb in range(5): e(f"v_add_u32 v{184+jb}, s46, v{20+jb}")
        e(f"s_add_u32 s46, s46, {STG}"); e(f"s_cmp_eq_u32 s46, {4*STG}"); e("s_cselect_b32 s46, 0, s46")
    def reads2(fs):
        xf = (112,192)[fs]; wf = (144,208)[fs]; L=[]
        for mb in range(4): L.append(f"ds_read_b128 v[{xf+mb*4}:{xf+mb*4+3}], v25 offset:{mb*1024}")
        for jb in range(5):
            for h in range(2):
                r_ = wf+jb*4+h*2
                L.append(f"ds_read_b64_tr_b16 v[{r_}:{r_+1}], v{184+jb} offset:{4096+h*768}")
        return L
    lab("G2_pro")
    dma2()
    e("s_add_u32 s35, s35, 1"); e("s_cmp_lt_i32 s35, 0"); e("s_cbranch_scc1 G2_pro")
    addrs2(); e("s_waitcnt vmcnt(30)")
    for r in reads2(0): e(r)
    lab("G2_loop")
    for fs in range(2):
        addrs2(); e("s_waitcnt vmcnt(20) lgkmcnt(0)")
        R = reads2(1-fs); k = 0; xf = (112,192)[fs]; wf = (144,208)[fs]
        for nb in range(5):
            for mb in range(4):
                a_ = ACC+(nb*4+mb)*4; w = wf+nb*4; x = xf+mb*4
                e(f"v_mfma_f32_16x16x32_bf16 v[{a_}:{a_+3}], v[{w}:{w+3}], v[{x}:{x+3}], v[{a_}:{a_+3}]")
                if k < 14 and mb != 3: e(R[k]); k += 1
        dma2()
        e("s_add_u32 s35, s35, 1")
    e("s_cmp_lt_i32 s35, s31"); e("s_cbranch_scc1 G2_loop")
    e("s_waitcnt lgkmcnt(0)")
    e("s_waitcnt vmcnt(0)"); e("s_nop 7")
    e("v_lshl_add_u32 v10, v2, 4, v29")
    for i in range(20): e(f"ds_write_b128 v10, v[{ACC+4*i}:{ACC+4*i+3}] offset:{i*1024}")
    srd(8, 16, 17, XN_SZ); srd(12, 40, 41, XN_SZ)
    e("v_and_b32 v11, 15, v2"); e("v_lshrrev_b32 v12, 4, v2")
    e("s_lshl_b32 s36, s21, 6"); e("s_lshl_b32 s37, s22, 4"); e("s_add_u32 s36, s36, s37")
    e("v_add_u32 v11, s36, v11"); e("v_mul_u32_u24 v11, 1280, v11")
    e("s_mul_i32 s37, s20, 80"); e("v_lshl_add_u32 v12, v12, 2, s37"); e("v_lshl_add_u32 v11, v12, 1, v11")
    e("v_lshlrev_b32 v10, 4, v2"); e("s_lshl_b32 s37, s22, 10"); e("v_add_u32 v10, s37, v10")
    e(f"v_add_u32 v13, {2*WB}, v10")
    e("s_mov_b32 s35, 0")
    e("s_waitcnt lgkmcnt(0)"); e("s_barrier")
    lab("G2_eloop")
    e("buffer_load_dwordx2 v[4:5], v11, s[8:11], 0 offen")
    e("ds_read_b128 v[32:35], v10"); e(f"ds_read_b128 v[36:39], v10 offset:{WB}")
    e("ds_read_b128 v[40:43], v13"); e(f"ds_read_b128 v[44:47], v13 offset:{WB}")
    e("v_add_u32 v10, 4096, v10"); e("v_add_u32 v13, 4096, v13")
    e("s_waitcnt vmcnt(0) lgkmcnt(0)")
    e("v_lshlrev_b32 v6, 16, v4"); e("v_and_b32 v7, 0xffff0000, v4")
    e("v_lshlrev_b32 v8, 16, v5"); e("v_and_b32 v9, 0xffff0000, v5")
    for j in range(4):
        e(f"v_add_f32 v{36+j}, v{36+j}, v{40+j}"); e(f"v_add_f32 v{36+j}, v{36+j}, v{44+j}")
        bf16r(f"v{36+j}", f"v{36+j}"); bf16r(f"v{32+j}", f"v{32+j}")
        e(f"v_add_f32 v{32+j}, v{6+j}, v{32+j}"); bf16r(f"v{32+j}", f"v{32+j}")
        e(f"v_add_f32 v{32+j}, v{32+j}, v{36+j}")
    e("v_cvt_pk_bf16_f32 v32, v32, v33"); e("v_cvt_pk_bf16_f32 v33, v34, v35")
    e("buffer_store_dwordx2 v[32:33], v11, s[12:15], 0 offen")
    e("v_add_u32 v11, 32, v11")
    e("s_add_u32 s35, s35, 1"); e("s_cmp_lt_u32 s35, 5"); e("s_cbranch_scc1 G2_eloop")
    lab("G2_done"); e("s_endpgm")
    kdesc("g2_kernel", 232)

HEAD = open("parallel_sum__sliding_local_dilated__glu_gated_swiglu__prompt.s.ref").read().split("; @launch")[0]
gen_ln(); gen_g1(); gen_at(); gen_g2()
txt = HEAD + """; @launch kernel=ln_kernel grid=(512,1,1) block=(256,1,1) lds=0
; @launch kernel=g1_kernel grid=(208,1,1) block=(512,1,1) lds=163840
; @launch kernel=at_kernel grid=(256,1,1) block=(256,1,1) lds=0
; @launch kernel=g2_kernel grid=(256,1,1) block=(256,1,1) lds=163840
.amdgcn_target "amdgcn-amd-amdhsa--gfx950"
.text
""" + "\n".join(OUT) + '\n.section .rodata,"a"\n' + "\n".join(DESCS) + "\n"
open(os.environ.get("GO","parallel_sum__sliding_local_dilated__glu_gated_swiglu__prompt.s"), "w").write(txt)
```

```python
import sys, os
X=os.environ.get("GX","")
OUT = []
def e(s): OUT.append("    " + s)
def lab(s): OUT.append(s + ":")
def c(s): OUT.append("    ; " + s)

XN_OFF  = 0x0
QKV_OFF = 0x300000
OH_OFF  = 0xB00000
XN_SZ, QKV_SZ, OH_SZ = 2048*1280, 2048*3840, 2048*4352

def srd(d, lo, hi, size, add=0):
    if add:
        e(f"s_add_u32 s{d}, s{lo}, {add:#x}")
        e(f"s_addc_u32 s{d+1}, s{hi}, 0")
    else:
        e(f"s_mov_b32 s{d}, s{lo}")
        e(f"s_mov_b32 s{d+1}, s{hi}")
    e(f"s_and_b32 s{d+1}, s{d+1}, 0xffff")
    e(f"s_mov_b32 s{d+2}, {size:#x}")
    e(f"s_mov_b32 s{d+3}, 0x00020000")

def kstart(name):
    OUT.append(f".globl {name}\n.p2align 8\n.type {name},@function\n{name}:")

DESCS = []
def kdesc(name, vgpr, sgpr=96):
    acc = ((vgpr + 3)//4)*4
    DESCS.append(f""".p2align 6
.amdhsa_kernel {name}
  .amdhsa_next_free_vgpr {vgpr}
  .amdhsa_next_free_sgpr {sgpr}
  .amdhsa_accum_offset {acc}
  .amdhsa_group_segment_fixed_size 0
  .amdhsa_kernarg_size 80
  .amdhsa_user_sgpr_count 2
  .amdhsa_user_sgpr_kernarg_segment_ptr 1
  .amdhsa_system_sgpr_workgroup_id_x 1
.end_amdhsa_kernel""")

def bf16r(dst, src):
    e(f"v_cvt_pk_bf16_f32 {dst}, {src}, {src}")
    e(f"v_lshlrev_b32 {dst}, 16, {dst}")

def wave_sum(v, tmp, sdst):
    for m in (1,2,4,8,16):
        e(f"ds_swizzle_b32 {tmp}, {v} offset:{(m<<10)|0x1f:#x}")
        e("s_waitcnt lgkmcnt(0)")
        e(f"v_add_f32 {v}, {v}, {tmp}")
    e("s_nop 1")
    e(f"v_readlane_b32 {sdst}, {v}, 32")
    e("s_nop 3")
    e(f"v_add_f32 {v}, {sdst}, {v}")
    e("s_nop 1")
    e(f"v_readlane_b32 {sdst}, {v}, 0")
    e("s_nop 3")

def gen_ln():
    kstart("ln_kernel")
    e("s_cmp_ge_u32 s2, 512"); e("s_cbranch_scc1 LN_done")
    e("s_load_dwordx2 s[4:5], s[0:1], 0")
    e("s_load_dwordx2 s[6:7], s[0:1], 72")
    e("s_load_dwordx4 s[24:27], s[0:1], 8")
    e("s_load_dwordx4 s[28:31], s[0:1], 32")
    e("s_load_dwordx2 s[32:33], s[0:1], 48")
    e("v_lshrrev_b32 v1, 6, v0")
    e("v_and_b32 v2, 63, v0")
    e("s_lshl_b32 s3, s2, 2")
    e("v_add_u32 v1, s3, v1")
    e("v_mul_u32_u24 v1, 1280, v1")
    e("v_lshl_add_u32 v3, v2, 4, v1")
    e("v_lshl_add_u32 v4, v2, 2, v1")
    e("v_add_u32 v4, 1024, v4")
    e("s_waitcnt lgkmcnt(0)")
    srd(8, 4, 5, XN_SZ)
    srd(12, 6, 7, XN_SZ, XN_OFF)
    e("buffer_load_dwordx4 v[8:11], v3, s[8:11], 0 offen")
    e("buffer_load_dword v12, v4, s[8:11], 0 offen")
    e("v_lshlrev_b32 v39, 4, v0")
    for k,(lo,sz) in enumerate(((24,640*3840),(26,640*1280),(28,640*3072),(30,640*3072),(32,1536*1280))):
        srd(36, lo, lo+1, sz)
        e(f"s_mul_i32 s34, s2, {sz//512}")
        e(f"buffer_load_dwordx4 v[{40+8*k}:{43+8*k}], v39, s[36:39], s34 offen")
        if sz//512 > 4096: e(f"buffer_load_dwordx4 v[{44+8*k}:{47+8*k}], v39, s[36:39], s34 offen offset:4080")
    e("s_waitcnt vmcnt(6)")
    for i in range(5):
        e(f"v_lshlrev_b32 v{16+2*i}, 16, v{8+i}")
        e(f"v_and_b32 v{17+2*i}, 0xffff0000, v{8+i}")
    e("v_add_f32 v30, v16, v17")
    for i in range(2,10): e(f"v_add_f32 v30, v30, v{16+i}")
    wave_sum("v30", "v31", "s20")
    e("v_mov_b32 v32, 0x3acccccd")
    e("v_mul_f32 v33, s20, v32")
    e("v_sub_f32 v34, v16, v33"); e("v_mul_f32 v30, v34, v34")
    for i in range(1,10):
        e(f"v_sub_f32 v34, v{16+i}, v33"); e("v_fmac_f32 v30, v34, v34")
    wave_sum("v30", "v31", "s20")
    e("v_mul_f32 v35, s20, v32")
    bf16r("v33", "v33"); bf16r("v35", "v35")
    e("v_add_f32 v35, 0x3727c5ac, v35")
    bf16r("v35", "v35")
    e("v_sqrt_f32 v35, v35"); e("s_nop 0")
    bf16r("v35", "v35")
    e("v_rcp_f32 v36, v35"); e("s_nop 0")
    for i in range(10):
        e(f"v_sub_f32 v{16+i}, v{16+i}, v33")
        bf16r(f"v{16+i}", f"v{16+i}")
        e(f"v_mul_f32 v37, v{16+i}, v36")
        e(f"v_fma_f32 v38, -v37, v35, v{16+i}")
        e(f"v_fma_f32 v{16+i}, v38, v36, v37")
    for i in range(5):
        e(f"v_cvt_pk_bf16_f32 v{8+i}, v{16+2*i}, v{17+2*i}")
    e("buffer_store_dwordx4 v[8:11], v3, s[12:15], 0 offen")
    e("buffer_store_dword v12, v4, s[12:15], 0 offen")
    lab("LN_done"); e("s_endpgm")
    kdesc("ln_kernel", 88)

def gen_g1():
    kstart("g1_kernel")
    STG = 28672; NB = 5; NT = 20
    e("s_cmp_ge_u32 s2, 208"); e("s_cbranch_scc1 G1_done")
    if 'clk' in X:
        e("s_memtime s[60:61]"); e("s_memrealtime s[62:63]"); e("s_load_dwordx2 s[64:65], s[0:1], 64")
    e("s_load_dwordx2 s[4:5], s[0:1], 8")
    e("s_load_dwordx2 s[6:7], s[0:1], 32")
    e("s_load_dwordx2 s[16:17], s[0:1], 40")
    e("s_load_dwordx2 s[18:19], s[0:1], 72")
    e("s_and_b32 s3, s2, 7"); e("s_mul_i32 s3, s3, 26"); e("s_lshr_b32 s20, s2, 3"); e("s_add_u32 s3, s3, s20")
    e("s_lshr_b32 s20, s3, 3")
    e("s_and_b32 s21, s3, 7")
    e("v_lshrrev_b32 v1, 6, v0"); e("v_and_b32 v2, 63, v0"); e("s_nop 0")
    e("v_readfirstlane_b32 s22, v1")
    e("s_waitcnt lgkmcnt(0)")
    srd(8, 18, 19, XN_SZ, XN_OFF)
    e("s_cmp_ge_u32 s22, 3"); e("s_cselect_b32 s23, 1, 0")
    e("s_cmp_lt_u32 s20, 10"); e("s_cbranch_scc1 G1_qkvsetup")
    e("s_sub_u32 s24, s20, 10"); e("s_mul_i32 s24, s24, 192")
    e("s_cmp_eq_u32 s23, 0"); e("s_cselect_b32 s26, s6, s16"); e("s_cselect_b32 s27, s7, s17")
    e("s_mov_b32 s25, 3072")
    srd(12, 26, 27, 640*3072)
    e("s_branch G1_setup2")
    lab("G1_qkvsetup")
    e("s_mul_i32 s24, s20, 384"); e("s_mul_i32 s25, s23, 192"); e("s_add_u32 s24, s24, s25")
    e("s_mov_b32 s25, 3840")
    srd(12, 4, 5, 640*3840)
    lab("G1_setup2")
    e("s_lshl_b32 s28, s21, 8")
    e("s_mov_b32 s38, s10"); e("s_mov_b32 s39, s14")
    e("v_bfe_u32 v10, v2, 4, 2"); e("v_lshlrev_b32 v10, 1, v10"); e("v_mov_b32 v11, 0x78")
    e("v_lshrrev_b32 v10, v10, v11"); e("v_and_b32 v10, 3, v10")
    e("v_and_b32 v11, 3, v2"); e("v_xor_b32 v10, v10, v11")
    e("v_lshrrev_b32 v11, 2, v2"); e("v_lshl_add_u32 v11, v1, 5, v11"); e("v_add_u32 v11, s28, v11")
    e("v_mul_u32_u24 v11, 1280, v11"); e("v_lshl_add_u32 v4, v10, 4, v11")
    e("v_add_u32 v5, 20480, v4")
    e("s_lshl_b32 s29, s22, 1"); e("s_add_u32 s30, s22, 4"); e("s_cmp_lt_u32 s22, 4"); e("s_cselect_b32 s29, s29, s30")
    e("s_cmp_ge_u32 s29, 6"); e("s_cselect_b32 s30, 6, 0"); e("s_sub_u32 s30, s29, s30")
    e("s_lshl_b32 s30, s30, 6")
    for i in range(2):
        e(f"v_add_u32 v11, s30, v2")
        if i: e("v_add_u32 v11, 64, v11")
        e("v_mul_u32_u24 v12, 43691, v11"); e("v_lshrrev_b32 v12, 19, v12")
        e("v_mul_u32_u24 v13, 12, v12"); e("v_sub_u32 v13, v11, v13")
        e("v_bfe_u32 v17, v12, 3, 1"); e("v_lshlrev_b32 v17, 1, v17"); e("v_xor_b32 v13, v13, v17")
        e("v_mul_lo_u32 v12, v12, s25")
        e("v_lshl_add_u32 v12, v13, 4, v12")
        e(f"v_add_u32 v{6+i}, s24, v12")
    e("v_and_b32 v10, 15, v2"); e("v_lshrrev_b32 v11, 4, v2")
    e("v_lshrrev_b32 v12, 2, v10"); e("v_lshlrev_b32 v12, 1, v12"); e("v_mov_b32 v13, 0x78")
    e("v_lshrrev_b32 v12, v12, v13"); e("v_and_b32 v12, 3, v12"); e("v_xor_b32 v12, v12, v11")
    e("v_and_b32 v13, 3, v1"); e("v_lshlrev_b32 v13, 12, v13")
    e("v_lshl_add_u32 v13, v10, 6, v13")
    e("v_lshl_add_u32 v18, v12, 4, v13")
    e("v_lshrrev_b32 v12, 2, v10"); e("v_and_b32 v13, 3, v10")
    e("v_lshrrev_b32 v17, 2, v1")
    e("v_lshl_add_u32 v26, v11, 3, v12"); e("v_mul_u32_u24 v26, 192, v26")
    e("v_and_b32 v27, 1, v13"); e("v_lshl_add_u32 v26, v27, 3, v26")
    e("v_mul_u32_u24 v27, 6, v17"); e("v_lshrrev_b32 v28, 1, v13"); e("v_add_u32 v27, v27, v28")
    e("v_and_b32 v28, 1, v11"); e("v_lshlrev_b32 v28, 1, v28")
    for jb in range(3):
        e(f"v_add_u32 v29, {2*jb}, v27"); e("v_xor_b32 v29, v29, v28")
        e(f"v_lshl_add_u32 v{19+jb}, v29, 4, v26")
    ACC = 32
    for i in range(96): e(f"v_mov_b32 v{ACC+i}, 0")
    XF = 128; WF = 144
    e("s_lshl_b32 s30, s22, 11")
    e("s_lshl_b32 s31, s29, 10"); e("s_add_u32 s31, s31, 16384")
    e("s_mov_b32 s32, 0"); e("s_mov_b32 s33, 0"); e("s_lshl_b32 s34, s25, 5")
    cnt=[0]
    def dma():
        cnt[0]+=1
        e("s_cmp_lt_i32 s35, 16"); e("s_cselect_b32 s10, s38, 0"); e("s_cselect_b32 s14, s39, 0")
        e("s_add_u32 s40, s30, s36"); e("s_add_u32 s41, s31, s36")
        e("s_mov_b32 m0, s40"); e("s_add_u32 s40, s40, 1024")
        e("buffer_load_dwordx4 v4, s[8:11], s32 offen lds")
        e("s_mov_b32 m0, s40"); e("s_nop 0")
        e("buffer_load_dwordx4 v5, s[8:11], s32 offen lds")
        e("s_mov_b32 m0, s41"); e("s_add_u32 s41, s41, 1024")
        e("buffer_load_dwordx4 v6, s[12:15], s33 offen lds")
        e("s_cmp_ge_u32 s22, 4"); e(f"s_cbranch_scc1 G1_sk{cnt[0]}")
        e("s_mov_b32 m0, s41"); e("s_nop 0")
        e("buffer_load_dwordx4 v7, s[12:15], s33 offen lds")
        lab(f"G1_sk{cnt[0]}")
        e("s_add_u32 s32, s32, 64"); e("s_add_u32 s33, s33, s34")
        e(f"s_add_u32 s36, s36, {STG}"); e(f"s_cmp_eq_u32 s36, {NB*STG}"); e("s_cselect_b32 s36, 0, s36")
    def waitv(k):
        cnt[0]+=1
        e("s_cmp_ge_u32 s22, 4"); e(f"s_cbranch_scc1 G1_wa{cnt[0]}")
        e(f"s_waitcnt vmcnt({4*k})"); e(f"s_branch G1_wb{cnt[0]}")
        lab(f"G1_wa{cnt[0]}"); e(f"s_waitcnt vmcnt({3*k})"); lab(f"G1_wb{cnt[0]}")
    def addrs():
        e("v_add_u32 v22, s37, v18"); e("v_add_u32 v23, s37, v19"); e("v_add_u32 v24, s37, v20"); e("v_add_u32 v25, s37, v21")
        e(f"s_add_u32 s37, s37, {STG}"); e(f"s_cmp_eq_u32 s37, {NB*STG}"); e("s_cselect_b32 s37, 0, s37")
    def reads(fs):
        L=[]
        xf = XF+40*fs; wf = WF+40*fs
        for mb in range(4): L.append(f"ds_read_b128 v[{xf+mb*4}:{xf+mb*4+3}], v22 offset:{mb*1024}")
        for s_ in range(2):
            for jb in range(3):
                for h in range(2):
                    r_ = wf + (s_*3+jb)*4 + h*2
                    L.append(f"ds_read_b64_tr_b16 v[{r_}:{r_+1}], v{23+jb} offset:{16384+s_*6144+h*768}")
        return L
    e("s_mov_b32 s35, -4"); e("s_mov_b32 s36, 0"); e("s_mov_b32 s37, 0")
    lab("G1_pro")
    dma()
    e("s_add_u32 s35, s35, 1"); e("s_cmp_lt_i32 s35, 0"); e("s_cbranch_scc1 G1_pro")
    waitv(3); addrs(); e("s_barrier")
    for r in reads(0): e(r)
    if 'clk' in X: e("s_memtime s[80:81]")
    lab("G1_loop")
    for fs in range(2):
        waitv(2); addrs(); e("s_barrier")
        dma()
        e("s_waitcnt lgkmcnt(0)")
        R = reads(1-fs); k = 0
        xf = XF+40*fs; wf = WF+40*fs
        for nb in range(6):
            for mb in range(4):
                a_ = ACC + (nb*4+mb)*4; w = wf+nb*4; x = xf+mb*4
                e(f"v_mfma_f32_16x16x32_bf16 v[{a_}:{a_+3}], v[{w}:{w+3}], v[{x}:{x+3}], v[{a_}:{a_+3}]")
                if k < 16 and (nb*4+mb) % 4 != 3: e(R[k]); k += 1
        e("s_add_u32 s35, s35, 1")
    e(f"s_cmp_lt_i32 s35, {NT}"); e("s_cbranch_scc1 G1_loop")
    e("s_waitcnt lgkmcnt(0)")
    if 'clk' in X: e("s_memtime s[82:83]")
    e("s_waitcnt vmcnt(0)")
    e("s_barrier")
    e("v_and_b32 v10, 15, v2"); e("v_lshrrev_b32 v11, 4, v2")
    e("v_and_b32 v12, 3, v1"); e("v_lshl_add_u32 v10, v12, 6, v10"); e("v_add_u32 v10, s28, v10")
    e("v_lshrrev_b32 v12, 2, v1"); e("v_mul_u32_u24 v12, 48, v12"); e("v_lshl_add_u32 v11, v11, 2, v12")
    for i in range(24):
        g = ACC + 4*i
        e(f"v_cvt_pk_bf16_f32 v{128+2*i}, v{g}, v{g+1}"); e(f"v_cvt_pk_bf16_f32 v{129+2*i}, v{g+2}, v{g+3}")
    e("v_subrev_u32 v10, s28, v10")
    TB = 98304
    e("s_cmp_lt_u32 s20, 10"); e("s_cbranch_scc1 G1_epq")
    srd(8, 18, 19, OH_SZ, OH_OFF)
    e("s_sub_u32 s24, s20, 10"); e("s_mul_i32 s24, s24, 192"); e("s_add_u32 s24, s24, 1280")
    e("s_mul_i32 s25, s28, 4352"); e("s_add_u32 s24, s24, s25")
    e("s_mov_b32 s25, 4352"); e("s_mov_b32 s26, 5462"); e("s_mov_b32 s27, 12"); e("s_mov_b32 s29, 208"); e("s_mov_b32 s30, 6")
    e("v_mul_u32_u24 v10, 208, v10"); e("v_lshl_add_u32 v10, v11, 1, v10"); e(f"v_add_u32 v10, {TB}, v10")
    e("v_mul_u32_u24 v12, 12288, v1"); e("v_lshl_add_u32 v12, v2, 3, v12")
    for i in range(24): e(f"ds_write_b64 v12, v[{128+2*i}:{129+2*i}] offset:{i*512}")
    e("s_mov_b32 s36, 0xbfb8aa3b"); e("s_mov_b32 s35, 0")
    e("s_waitcnt lgkmcnt(0)")
    lab("G1_eloop")
    e("ds_read_b64 v[32:33], v12"); e("ds_read_b64 v[34:35], v12 offset:6144")
    e("v_add_u32 v12, 512, v12")
    e("s_waitcnt lgkmcnt(0)")
    for j in range(4):
        src = 32 + (j>>1); usrc = 34 + (j>>1)
        if j&1: e(f"v_and_b32 v{40+j}, 0xffff0000, v{src}"); e(f"v_and_b32 v{44+j}, 0xffff0000, v{usrc}")
        else:   e(f"v_lshlrev_b32 v{40+j}, 16, v{src}"); e(f"v_lshlrev_b32 v{44+j}, 16, v{usrc}")
    for j in range(4): e(f"v_mul_f32 v{48+j}, s36, v{40+j}")
    for j in range(4): e(f"v_exp_f32 v{48+j}, v{48+j}")
    for j in range(4): e(f"v_add_f32 v{48+j}, 1.0, v{48+j}")
    for j in range(4): e(f"v_rcp_f32 v{48+j}, v{48+j}")
    for j in range(4): e(f"v_mul_f32 v{48+j}, v{40+j}, v{48+j}")
    for j in range(4): bf16r(f"v{48+j}", f"v{48+j}")
    for j in range(4): e(f"v_mul_f32 v{48+j}, v{48+j}, v{44+j}")
    e("v_cvt_pk_bf16_f32 v36, v48, v49"); e("v_cvt_pk_bf16_f32 v37, v50, v51")
    e("ds_write_b64 v10, v[36:37]")
    e("s_add_u32 s35, s35, 1")
    e("s_and_b32 s38, s35, 3"); e(f"s_mov_b32 s39, {-16*208}"); e("s_cmp_eq_u32 s38, 0"); e(f"s_cselect_b32 s38, {48*208-32}, s39"); e("v_subrev_u32 v10, s38, v10")
    e("s_cmp_lt_u32 s35, 12"); e("s_cbranch_scc1 G1_eloop")
    e("s_branch G1_copy")
    lab("G1_epq")
    srd(8, 18, 19, QKV_SZ, QKV_OFF)
    e("s_mul_i32 s24, s20, 384"); e("s_mul_i32 s25, s28, 3840"); e("s_add_u32 s24, s24, s25")
    e("s_mov_b32 s25, 3840"); e("s_mov_b32 s26, 2731"); e("s_mov_b32 s27, 24"); e("s_mov_b32 s29, 400"); e("s_mov_b32 s30, 12")
    e("v_mul_u32_u24 v10, 400, v10"); e("v_lshl_add_u32 v10, v11, 1, v10"); e(f"v_add_u32 v10, {TB-102400+61440}, v10")
    for mb in range(4):
        for nb in range(6):
            i = nb*4+mb
            e(f"ds_write_b64 v10, v[{128+2*i}:{129+2*i}] offset:{mb*6400+(nb//3)*192+(nb%3)*32}")
    lab("G1_copy")
    if 'clk' in X: e("s_memtime s[84:85]")
    e(f"s_mov_b32 s39, {TB}"); e("s_cmp_lt_u32 s20, 10"); e(f"s_cselect_b32 s31, {TB-102400+61440}, s39")
    e("s_waitcnt lgkmcnt(0)"); e("s_barrier")
    e("s_mov_b32 s35, 0")
    lab("G1_cloop")
    e("v_mul_lo_u32 v10, v0, s26"); e("v_lshrrev_b32 v10, 16, v10")
    e("v_mul_lo_u32 v11, v10, s27"); e("v_sub_u32 v11, v0, v11")
    e("v_mul_lo_u32 v12, v10, s29"); e("v_lshl_add_u32 v12, v11, 4, v12"); e("v_add_u32 v12, s31, v12")
    e("ds_read_b128 v[32:35], v12")
    e("v_mul_lo_u32 v13, v10, s25"); e("v_lshl_add_u32 v13, v11, 4, v13")
    e("v_add_u32 v0, 512, v0")
    e("s_waitcnt lgkmcnt(0)")
    e("buffer_store_dwordx4 v[32:35], v13, s[8:11], s24 offen")
    e("s_add_u32 s35, s35, 1"); e("s_cmp_lt_u32 s35, s30"); e("s_cbranch_scc1 G1_cloop")
    lab("G1_fin")
    if 'clk' in X:
        e("s_waitcnt vmcnt(0)")
        e("s_memtime s[66:67]"); e("s_memrealtime s[68:69]"); e("s_waitcnt lgkmcnt(0)")
        e("s_sub_u32 s66, s66, s60"); e("s_sub_u32 s80, s80, s60"); e("s_sub_u32 s82, s82, s60"); e("s_sub_u32 s84, s84, s60")
        srd(72, 64, 65, 256)
        e("v_mov_b32 v60, s80"); e("v_mov_b32 v61, s82"); e("v_mov_b32 v62, s84"); e("v_mov_b32 v63, s66"); e("v_mov_b32 v64, 0")
        e("s_cmp_lg_u32 s22, 0"); e("s_cbranch_scc1 G1_done")
        e("s_cmp_eq_u32 s2, 207"); e("s_cselect_b32 s70, 16, 0"); e("s_cbranch_scc1 G1_st")
        e("s_cmp_lg_u32 s2, 0"); e("s_cbranch_scc1 G1_done")
        lab("G1_st")
        e("buffer_store_dwordx4 v[60:63], v64, s[72:75], s70 offen")
    lab("G1_done"); e("s_endpgm")
    kdesc("g1_kernel", 208)

def gen_at():
    kstart("at_kernel")
    e("s_cmp_ge_u32 s2, 256"); e("s_cbranch_scc1 AT_done")
    e("s_load_dwordx2 s[18:19], s[0:1], 72")
    e("s_load_dwordx2 s[24:25], s[0:1], 16"); e("s_load_dwordx2 s[26:27], s[0:1], 48")
    e("s_lshl_b32 s3, s2, 8"); e("v_add_u32 v1, s3, v0")
    e("v_lshrrev_b32 v2, 5, v1"); e("v_and_b32 v3, 31, v1")
    e("v_mul_u32_u24 v3, 40, v3")
    e("s_waitcnt lgkmcnt(0)")
    srd(8, 18, 19, QKV_SZ, QKV_OFF); srd(12, 18, 19, OH_SZ, OH_OFF)
    e("v_mul_u32_u24 v4, 3840, v2"); e("v_add_u32 v4, v4, v3")
    Q=10; K=20; L=100; V=140
    for i in range(5): e(f"buffer_load_dwordx2 v[{Q+2*i}:{Q+2*i+1}], v4, s[8:11], 0 offen offset:{8*i}")
    for w in range(8):
        e(f"v_subrev_u32 v5, {2*w}, v2"); e("v_max_i32 v5, 0, v5")
        e("v_mul_u32_u24 v5, 3840, v5"); e(f"v_add_u32 v{110+w}, v5, v3")
        for i in range(5):
            e(f"buffer_load_dwordx2 v[{K+10*w+2*i}:{K+10*w+2*i+1}], v{110+w}, s[8:11], 0 offen offset:{1280+8*i}")
    for w in range(8):
        for i in range(5):
            e(f"buffer_load_dwordx2 v[{V+10*w+2*i}:{V+10*w+2*i+1}], v{110+w}, s[8:11], 0 offen offset:{2560+8*i}")
    e("s_mov_b32 s20, 0x3e64f92e"); e("s_mov_b32 s21, 0xce6e0000")
    for w in range(8): e(f"v_mov_b32 v{L+w}, 0")
    e("s_waitcnt vmcnt(40)")
    for i in range(10):
        for w in range(8): e(f"v_dot2_f32_bf16 v{L+w}, v{Q+i}, v{K+10*w+i}, v{L+w}")
    e("v_mov_b32 v5, s21")
    for w in range(8):
        bf16r(f"v{L+w}", f"v{L+w}"); e(f"v_mul_f32 v{L+w}, s20, v{L+w}"); bf16r(f"v{L+w}", f"v{L+w}")
        if w:
            e(f"v_cmp_le_u32 vcc, {2*w}, v2"); e("s_nop 1")
            e(f"v_cndmask_b32 v{L+w}, v5, v{L+w}, vcc")
    e(f"v_max_f32 v5, v{L}, v{L+1}")
    for w in range(2,8): e(f"v_max_f32 v5, v5, v{L+w}")
    e("s_mov_b32 s22, 0x3fb8aa3b")
    e("v_mov_b32 v6, 0")
    for w in range(8):
        e(f"v_sub_f32 v{L+w}, v{L+w}, v5"); e(f"v_mul_f32 v{L+w}, s22, v{L+w}"); e(f"v_exp_f32 v{L+w}, v{L+w}")
    for w in range(8): e(f"v_add_f32 v6, v6, v{L+w}")
    e("v_rcp_f32 v6, v6"); e("s_nop 0")
    for w in range(8):
        e(f"v_mul_f32 v{L+w}, v{L+w}, v6"); bf16r(f"v{L+w}", f"v{L+w}")
    e("s_waitcnt vmcnt(0)")
    O=120
    for d in range(20): e(f"v_mov_b32 v{O+d}, 0")
    for w in range(8):
        for i in range(10):
            e(f"v_lshlrev_b32 v5, 16, v{V+10*w+i}"); e(f"v_fmac_f32 v{O+2*i}, v{L+w}, v5")
            e(f"v_and_b32 v7, 0xffff0000, v{V+10*w+i}"); e(f"v_fmac_f32 v{O+2*i+1}, v{L+w}, v7")
    for i in range(10): e(f"v_cvt_pk_bf16_f32 v{Q+i}, v{O+2*i}, v{O+2*i+1}")
    e("v_mul_u32_u24 v4, 4352, v2"); e("v_add_u32 v4, v4, v3")
    for i in range(5): e(f"buffer_store_dwordx2 v[{Q+2*i}:{Q+2*i+1}], v4, s[12:15], 0 offen offset:{8*i}")
    e("s_lshr_b32 s3, s2, 3"); e("v_lshlrev_b32 v5, 4, v0")
    for (lo, sz) in ((24, 640*1280), (26, 1536*1280)):
        srd(28, lo, lo+1, sz)
        e(f"s_mul_i32 s32, s3, {sz//32}")
        for k in range((sz//32 + 4095)//4096):
            e(f"buffer_load_dwordx4 v[220:223], v5, s[28:31], s32 offen")
            e("s_add_u32 s32, s32, 4096")
    lab("AT_done"); e("s_endpgm")
    kdesc("at_kernel", 224)

def gen_g2():
    kstart("g2_kernel")
    WB = 40960; STG = 20480
    e("s_cmp_ge_u32 s2, 256"); e("s_cbranch_scc1 G2_done")
    e("s_load_dwordx2 s[4:5], s[0:1], 16")
    e("s_load_dwordx2 s[6:7], s[0:1], 48")
    e("s_load_dwordx2 s[16:17], s[0:1], 0")
    e("s_load_dwordx2 s[18:19], s[0:1], 72")
    e("s_load_dwordx2 s[40:41], s[0:1], 56")
    e("s_and_b32 s3, s2, 7"); e("s_lshr_b32 s20, s2, 3")
    e("s_lshr_b32 s21, s20, 3"); e("s_lshl_b32 s3, s3, 2"); e("s_add_u32 s21, s21, s3")
    e("s_and_b32 s20, s20, 7")
    e("v_lshrrev_b32 v1, 6, v0"); e("v_and_b32 v2, 63, v0"); e("s_nop 0")
    e("v_readfirstlane_b32 s22, v1")
    e("s_waitcnt lgkmcnt(0)")
    srd(8, 18, 19, OH_SZ, OH_OFF)
    e("s_cmp_eq_u32 s22, 0"); e("s_cselect_b32 s26, s4, s6"); e("s_cselect_b32 s27, s5, s7")
    e("s_mov_b32 s39, 1536*1280"); e("s_cselect_b32 s28, 640*1280, s39")
    e("s_mov_b32 s12, s26"); e("s_and_b32 s13, s27, 0xffff"); e("s_mov_b32 s14, s28"); e("s_mov_b32 s15, 0x00020000")
    e("s_sub_u32 s29, s22, 1"); e("s_lshl_b32 s29, s29, 9")
    e("s_cmp_eq_u32 s22, 0"); e("s_cselect_b32 s29, 0, s29")
    e("s_add_u32 s30, s29, 640"); e("s_cmp_eq_u32 s22, 0"); e("s_cselect_b32 s30, 0, s30")
    e("s_cselect_b32 s31, 5, 4")
    e("s_lshl_b32 s32, s30, 1")
    e("s_lshl_b32 s36, s21, 6"); e("s_mul_i32 s36, s36, 4352"); e("s_add_u32 s32, s32, s36")
    e("s_mul_i32 s33, s29, 1280")
    e("s_mul_i32 s37, s20, 160"); e("s_add_u32 s33, s33, s37")
    STG = 10240
    e("v_bfe_u32 v184, v2, 4, 2"); e("v_lshlrev_b32 v184, 1, v184"); e("v_mov_b32 v185, 0x78")
    e("v_lshrrev_b32 v184, v184, v185"); e("v_and_b32 v184, 3, v184")
    e("v_and_b32 v185, 3, v2"); e("v_xor_b32 v184, v184, v185")
    e("v_lshrrev_b32 v185, 2, v2"); e("v_mul_u32_u24 v185, 4352, v185"); e("v_lshl_add_u32 v4, v184, 4, v185")
    for q in range(6):
        e(f"v_add_u32 v20, {64*q}, v2")
        e("v_mul_u32_u24 v21, 43691, v20"); e("v_lshrrev_b32 v21, 19, v21")
        e("v_mul_u32_u24 v22, 12, v21"); e("v_sub_u32 v22, v20, v22")
        e("v_bfe_u32 v23, v21, 3, 1"); e("v_lshlrev_b32 v23, 1, v23"); e("v_xor_b32 v22, v22, v23")
        e("v_mul_u32_u24 v21, 1280, v21")
        e(f"v_lshl_add_u32 v{6+q}, v22, 4, v21")
    e("v_mul_u32_u24 v29, 40960, v1")
    e("v_and_b32 v184, 15, v2"); e("v_lshrrev_b32 v185, 4, v2")
    e("v_lshrrev_b32 v186, 2, v184"); e("v_lshlrev_b32 v186, 1, v186"); e("v_mov_b32 v187, 0x78")
    e("v_lshrrev_b32 v186, v186, v187"); e("v_and_b32 v186, 3, v186"); e("v_xor_b32 v186, v186, v185")
    e("v_lshl_add_u32 v187, v184, 6, v29")
    e("v_lshl_add_u32 v18, v186, 4, v187")
    e("v_lshrrev_b32 v186, 2, v184"); e("v_and_b32 v187, 3, v184")
    e("v_lshl_add_u32 v26, v185, 3, v186"); e("v_mul_u32_u24 v26, 192, v26")
    e("v_and_b32 v27, 1, v187"); e("v_lshl_add_u32 v26, v27, 3, v26"); e("v_add_u32 v26, v26, v29")
    for jb in range(5):
        e("v_lshrrev_b32 v28, 1, v187"); e(f"v_add_u32 v27, {2*jb}, v28")
        e("v_and_b32 v28, 1, v185"); e("v_lshlrev_b32 v28, 1, v28"); e("v_xor_b32 v27, v27, v28")
        e(f"v_lshl_add_u32 v{20+jb}, v27, 4, v26")
    ACC=32
    for i in range(80): e(f"v_mov_b32 v{ACC+i}, 0")
    XF=112; WF=144
    e("s_mul_i32 s34, s22, 40960")
    e("s_lshl_b32 s31, s31, 2")
    e("s_mov_b32 s42, s10"); e("s_mov_b32 s43, s14")
    e("s_mov_b32 s35, -4"); e("s_mov_b32 s36, 0"); e("s_sub_u32 s44, s31, 4"); e("s_mov_b32 s46, 0")
    def dma2():
        e("s_cmp_lt_i32 s35, s44"); e("s_cselect_b32 s10, s42, 0"); e("s_cselect_b32 s14, s43, 0")
        e("s_add_u32 s45, s34, s36"); e("s_mov_b32 s38, s32")
        for q in range(4):
            e("s_mov_b32 m0, s45"); e("s_add_u32 s45, s45, 1024")
            e(f"buffer_load_dwordx4 v4, s[8:11], s38 offen lds")
            if q < 3: e(f"s_add_u32 s38, s38, {16*4352}")
        for q in range(6):
            e("s_mov_b32 m0, s45"); e("s_add_u32 s45, s45, 1024")
            e(f"buffer_load_dwordx4 v{6+q}, s[12:15], s33 offen lds")
        e("s_add_u32 s32, s32, 64"); e("s_add_u32 s33, s33, 32*1280")
        e(f"s_add_u32 s36, s36, {STG}"); e(f"s_cmp_eq_u32 s36, {4*STG}"); e("s_cselect_b32 s36, 0, s36")
    def addrs2():
        e("v_add_u32 v25, s46, v18")
        for jb in range(5): e(f"v_add_u32 v{184+jb}, s46, v{20+jb}")
        e(f"s_add_u32 s46, s46, {STG}"); e(f"s_cmp_eq_u32 s46, {4*STG}"); e("s_cselect_b32 s46, 0, s46")
    def reads2(fs):
        xf = (112,192)[fs]; wf = (144,208)[fs]; L=[]
        for mb in range(4): L.append(f"ds_read_b128 v[{xf+mb*4}:{xf+mb*4+3}], v25 offset:{mb*1024}")
        for jb in range(5):
            for h in range(2):
                r_ = wf+jb*4+h*2
                L.append(f"ds_read_b64_tr_b16 v[{r_}:{r_+1}], v{184+jb} offset:{4096+h*768}")
        return L
    lab("G2_pro")
    dma2()
    e("s_add_u32 s35, s35, 1"); e("s_cmp_lt_i32 s35, 0"); e("s_cbranch_scc1 G2_pro")
    addrs2(); e("s_waitcnt vmcnt(30)")
    for r in reads2(0): e(r)
    lab("G2_loop")
    for fs in range(2):
        addrs2(); e("s_waitcnt vmcnt(20) lgkmcnt(0)")
        R = reads2(1-fs); k = 0; xf = (112,192)[fs]; wf = (144,208)[fs]
        for nb in range(5):
            for mb in range(4):
                a_ = ACC+(nb*4+mb)*4; w = wf+nb*4; x = xf+mb*4
                e(f"v_mfma_f32_16x16x32_bf16 v[{a_}:{a_+3}], v[{w}:{w+3}], v[{x}:{x+3}], v[{a_}:{a_+3}]")
                if k < 14 and mb != 3: e(R[k]); k += 1
        dma2()
        e("s_add_u32 s35, s35, 1")
    e("s_cmp_lt_i32 s35, s31"); e("s_cbranch_scc1 G2_loop")
    e("s_waitcnt lgkmcnt(0)")
    e("s_waitcnt vmcnt(0)"); e("s_nop 7")
    e("v_lshl_add_u32 v10, v2, 4, v29")
    for i in range(20): e(f"ds_write_b128 v10, v[{ACC+4*i}:{ACC+4*i+3}] offset:{i*1024}")
    srd(8, 16, 17, XN_SZ); srd(12, 40, 41, XN_SZ)
    e("v_and_b32 v11, 15, v2"); e("v_lshrrev_b32 v12, 4, v2")
    e("s_lshl_b32 s36, s21, 6"); e("s_lshl_b32 s37, s22, 4"); e("s_add_u32 s36, s36, s37")
    e("v_add_u32 v11, s36, v11"); e("v_mul_u32_u24 v11, 1280, v11")
    e("s_mul_i32 s37, s20, 80"); e("v_lshl_add_u32 v12, v12, 2, s37"); e("v_lshl_add_u32 v11, v12, 1, v11")
    e("v_lshlrev_b32 v10, 4, v2"); e("s_lshl_b32 s37, s22, 10"); e("v_add_u32 v10, s37, v10")
    e(f"v_add_u32 v13, {2*WB}, v10")
    e("s_mov_b32 s35, 0")
    e("s_waitcnt lgkmcnt(0)"); e("s_barrier")
    lab("G2_eloop")
    e("buffer_load_dwordx2 v[4:5], v11, s[8:11], 0 offen")
    e("ds_read_b128 v[32:35], v10"); e(f"ds_read_b128 v[36:39], v10 offset:{WB}")
    e("ds_read_b128 v[40:43], v13"); e(f"ds_read_b128 v[44:47], v13 offset:{WB}")
    e("v_add_u32 v10, 4096, v10"); e("v_add_u32 v13, 4096, v13")
    e("s_waitcnt vmcnt(0) lgkmcnt(0)")
    e("v_lshlrev_b32 v6, 16, v4"); e("v_and_b32 v7, 0xffff0000, v4")
    e("v_lshlrev_b32 v8, 16, v5"); e("v_and_b32 v9, 0xffff0000, v5")
    for j in range(4):
        e(f"v_add_f32 v{36+j}, v{36+j}, v{40+j}"); e(f"v_add_f32 v{36+j}, v{36+j}, v{44+j}")
        bf16r(f"v{36+j}", f"v{36+j}"); bf16r(f"v{32+j}", f"v{32+j}")
        e(f"v_add_f32 v{32+j}, v{6+j}, v{32+j}"); bf16r(f"v{32+j}", f"v{32+j}")
        e(f"v_add_f32 v{32+j}, v{32+j}, v{36+j}")
    e("v_cvt_pk_bf16_f32 v32, v32, v33"); e("v_cvt_pk_bf16_f32 v33, v34, v35")
    e("buffer_store_dwordx2 v[32:33], v11, s[12:15], 0 offen")
    e("v_add_u32 v11, 32, v11")
    e("s_add_u32 s35, s35, 1"); e("s_cmp_lt_u32 s35, 5"); e("s_cbranch_scc1 G2_eloop")
    lab("G2_done"); e("s_endpgm")
    kdesc("g2_kernel", 232)

HEAD = open("parallel_sum__sliding_local_dilated__glu_gated_swiglu__prompt.s.ref").read().split("; @launch")[0]
gen_ln(); gen_g1(); gen_at(); gen_g2()
txt = HEAD + """; @launch kernel=ln_kernel grid=(512,1,1) block=(256,1,1) lds=0
; @launch kernel=g1_kernel grid=(208,1,1) block=(512,1,1) lds=163840
; @launch kernel=at_kernel grid=(256,1,1) block=(256,1,1) lds=0
; @launch kernel=g2_kernel grid=(256,1,1) block=(256,1,1) lds=163840
.amdgcn_target "amdgcn-amd-amdhsa--gfx950"
.text
""" + "\n".join(OUT) + '\n.section .rodata,"a"\n' + "\n".join(DESCS) + "\n"
open(os.environ.get("GO","parallel_sum__sliding_local_dilated__glu_gated_swiglu__prompt.s"), "w").write(txt)
```

```python
import sys, os
X=os.environ.get("GX","")
OUT = []
def e(s): OUT.append("    " + s)
def lab(s): OUT.append(s + ":")
def c(s): OUT.append("    ; " + s)

XN_OFF  = 0x0
QKV_OFF = 0x300000
OH_OFF  = 0xB00000
XN_SZ, QKV_SZ, OH_SZ = 2048*1280, 2048*3840, 2048*4352

def srd(d, lo, hi, size, add=0):
    if add:
        e(f"s_add_u32 s{d}, s{lo}, {add:#x}")
        e(f"s_addc_u32 s{d+1}, s{hi}, 0")
    else:
        e(f"s_mov_b32 s{d}, s{lo}")
        e(f"s_mov_b32 s{d+1}, s{hi}")
    e(f"s_and_b32 s{d+1}, s{d+1}, 0xffff")
    e(f"s_mov_b32 s{d+2}, {size:#x}")
    e(f"s_mov_b32 s{d+3}, 0x00020000")

def kstart(name):
    OUT.append(f".globl {name}\n.p2align 8\n.type {name},@function\n{name}:")

DESCS = []
def kdesc(name, vgpr, sgpr=96):
    acc = ((vgpr + 3)//4)*4
    DESCS.append(f""".p2align 6
.amdhsa_kernel {name}
  .amdhsa_next_free_vgpr {vgpr}
  .amdhsa_next_free_sgpr {sgpr}
  .amdhsa_accum_offset {acc}
  .amdhsa_group_segment_fixed_size 0
  .amdhsa_kernarg_size 80
  .amdhsa_user_sgpr_count 2
  .amdhsa_user_sgpr_kernarg_segment_ptr 1
  .amdhsa_system_sgpr_workgroup_id_x 1
.end_amdhsa_kernel""")

def bf16r(dst, src):
    e(f"v_cvt_pk_bf16_f32 {dst}, {src}, {src}")
    e(f"v_lshlrev_b32 {dst}, 16, {dst}")

def wave_sum(v, tmp, sdst):
    for m in (1,2,4,8,16):
        e(f"ds_swizzle_b32 {tmp}, {v} offset:{(m<<10)|0x1f:#x}")
        e("s_waitcnt lgkmcnt(0)")
        e(f"v_add_f32 {v}, {v}, {tmp}")
    e("s_nop 1")
    e(f"v_readlane_b32 {sdst}, {v}, 32")
    e("s_nop 3")
    e(f"v_add_f32 {v}, {sdst}, {v}")
    e("s_nop 1")
    e(f"v_readlane_b32 {sdst}, {v}, 0")
    e("s_nop 3")

def gen_ln():
    kstart("ln_kernel")
    e("s_cmp_ge_u32 s2, 512"); e("s_cbranch_scc1 LN_done")
    e("s_load_dwordx2 s[4:5], s[0:1], 0")
    e("s_load_dwordx2 s[6:7], s[0:1], 72")
    e("s_load_dwordx4 s[24:27], s[0:1], 8")
    e("s_load_dwordx4 s[28:31], s[0:1], 32")
    e("s_load_dwordx2 s[32:33], s[0:1], 48")
    e("v_lshrrev_b32 v1, 6, v0")
    e("v_and_b32 v2, 63, v0")
    e("s_lshl_b32 s3, s2, 2")
    e("v_add_u32 v1, s3, v1")
    e("v_mul_u32_u24 v1, 1280, v1")
    e("v_lshl_add_u32 v3, v2, 4, v1")
    e("v_lshl_add_u32 v4, v2, 2, v1")
    e("v_add_u32 v4, 1024, v4")
    e("s_waitcnt lgkmcnt(0)")
    srd(8, 4, 5, XN_SZ)
    srd(12, 6, 7, XN_SZ, XN_OFF)
    e("buffer_load_dwordx4 v[8:11], v3, s[8:11], 0 offen")
    e("buffer_load_dword v12, v4, s[8:11], 0 offen")
    e("v_lshlrev_b32 v39, 4, v0")
    for k,(lo,sz) in enumerate(((24,640*3840),(26,640*1280),(28,640*3072),(30,640*3072),(32,1536*1280))):
        srd(36, lo, lo+1, sz)
        e(f"s_mul_i32 s34, s2, {sz//512}")
        e(f"buffer_load_dwordx4 v[{40+8*k}:{43+8*k}], v39, s[36:39], s34 offen")
        if sz//512 > 4096: e(f"buffer_load_dwordx4 v[{44+8*k}:{47+8*k}], v39, s[36:39], s34 offen offset:4080")
    e("s_waitcnt vmcnt(6)")
    for i in range(5):
        e(f"v_lshlrev_b32 v{16+2*i}, 16, v{8+i}")
        e(f"v_and_b32 v{17+2*i}, 0xffff0000, v{8+i}")
    e("v_add_f32 v30, v16, v17")
    for i in range(2,10): e(f"v_add_f32 v30, v30, v{16+i}")
    wave_sum("v30", "v31", "s20")
    e("v_mov_b32 v32, 0x3acccccd")
    e("v_mul_f32 v33, s20, v32")
    e("v_sub_f32 v34, v16, v33"); e("v_mul_f32 v30, v34, v34")
    for i in range(1,10):
        e(f"v_sub_f32 v34, v{16+i}, v33"); e("v_fmac_f32 v30, v34, v34")
    wave_sum("v30", "v31", "s20")
    e("v_mul_f32 v35, s20, v32")
    bf16r("v33", "v33"); bf16r("v35", "v35")
    e("v_add_f32 v35, 0x3727c5ac, v35")
    bf16r("v35", "v35")
    e("v_sqrt_f32 v35, v35"); e("s_nop 0")
    bf16r("v35", "v35")
    e("v_rcp_f32 v36, v35"); e("s_nop 0")
    for i in range(10):
        e(f"v_sub_f32 v{16+i}, v{16+i}, v33")
        bf16r(f"v{16+i}", f"v{16+i}")
        e(f"v_mul_f32 v37, v{16+i}, v36")
        e(f"v_fma_f32 v38, -v37, v35, v{16+i}")
        e(f"v_fma_f32 v{16+i}, v38, v36, v37")
    for i in range(5):
        e(f"v_cvt_pk_bf16_f32 v{8+i}, v{16+2*i}, v{17+2*i}")
    e("buffer_store_dwordx4 v[8:11], v3, s[12:15], 0 offen")
    e("buffer_store_dword v12, v4, s[12:15], 0 offen")
    lab("LN_done"); e("s_endpgm")
    kdesc("ln_kernel", 88)

def gen_g1():
    kstart("g1_kernel")
    STG = 28672; NB = 5; NT = 20
    e("s_cmp_ge_u32 s2, 208"); e("s_cbranch_scc1 G1_done")
    if 'clk' in X:
        e("s_memtime s[60:61]"); e("s_memrealtime s[62:63]"); e("s_load_dwordx2 s[64:65], s[0:1], 64")
    e("s_load_dwordx2 s[4:5], s[0:1], 8")
    e("s_load_dwordx2 s[6:7], s[0:1], 32")
    e("s_load_dwordx2 s[16:17], s[0:1], 40")
    e("s_load_dwordx2 s[18:19], s[0:1], 72")
    e("s_and_b32 s3, s2, 7"); e("s_mul_i32 s3, s3, 26"); e("s_lshr_b32 s20, s2, 3"); e("s_add_u32 s3, s3, s20")
    e("s_lshr_b32 s20, s3, 3")
    e("s_and_b32 s21, s3, 7")
    e("v_lshrrev_b32 v1, 6, v0"); e("v_and_b32 v2, 63, v0"); e("s_nop 0")
    e("v_readfirstlane_b32 s22, v1")
    e("s_waitcnt lgkmcnt(0)")
    srd(8, 18, 19, XN_SZ, XN_OFF)
    e("s_cmp_ge_u32 s22, 3"); e("s_cselect_b32 s23, 1, 0")
    e("s_cmp_lt_u32 s20, 10"); e("s_cbranch_scc1 G1_qkvsetup")
    e("s_sub_u32 s24, s20, 10"); e("s_mul_i32 s24, s24, 192")
    e("s_cmp_eq_u32 s23, 0"); e("s_cselect_b32 s26, s6, s16"); e("s_cselect_b32 s27, s7, s17")
    e("s_mov_b32 s25, 3072")
    srd(12, 26, 27, 640*3072)
    e("s_branch G1_setup2")
    lab("G1_qkvsetup")
    e("s_mul_i32 s24, s20, 384"); e("s_mul_i32 s25, s23, 192"); e("s_add_u32 s24, s24, s25")
    e("s_mov_b32 s25, 3840")
    srd(12, 4, 5, 640*3840)
    lab("G1_setup2")
    e("s_lshl_b32 s28, s21, 8")
    e("s_mov_b32 s38, s10"); e("s_mov_b32 s39, s14")
    e("v_bfe_u32 v10, v2, 4, 2"); e("v_lshlrev_b32 v10, 1, v10"); e("v_mov_b32 v11, 0x78")
    e("v_lshrrev_b32 v10, v10, v11"); e("v_and_b32 v10, 3, v10")
    e("v_and_b32 v11, 3, v2"); e("v_xor_b32 v10, v10, v11")
    e("v_lshrrev_b32 v11, 2, v2"); e("v_lshl_add_u32 v11, v1, 5, v11"); e("v_add_u32 v11, s28, v11")
    e("v_mul_u32_u24 v11, 1280, v11"); e("v_lshl_add_u32 v4, v10, 4, v11")
    e("v_add_u32 v5, 20480, v4")
    e("s_lshl_b32 s29, s22, 1"); e("s_add_u32 s30, s22, 4"); e("s_cmp_lt_u32 s22, 4"); e("s_cselect_b32 s29, s29, s30")
    e("s_cmp_ge_u32 s29, 6"); e("s_cselect_b32 s30, 6, 0"); e("s_sub_u32 s30, s29, s30")
    e("s_lshl_b32 s30, s30, 6")
    for i in range(2):
        e(f"v_add_u32 v11, s30, v2")
        if i: e("v_add_u32 v11, 64, v11")
        e("v_mul_u32_u24 v12, 43691, v11"); e("v_lshrrev_b32 v12, 19, v12")
        e("v_mul_u32_u24 v13, 12, v12"); e("v_sub_u32 v13, v11, v13")
        e("v_bfe_u32 v17, v12, 3, 1"); e("v_lshlrev_b32 v17, 1, v17"); e("v_xor_b32 v13, v13, v17")
        e("v_mul_lo_u32 v12, v12, s25")
        e("v_lshl_add_u32 v12, v13, 4, v12")
        e(f"v_add_u32 v{6+i}, s24, v12")
    e("v_and_b32 v10, 15, v2"); e("v_lshrrev_b32 v11, 4, v2")
    e("v_lshrrev_b32 v12, 2, v10"); e("v_lshlrev_b32 v12, 1, v12"); e("v_mov_b32 v13, 0x78")
    e("v_lshrrev_b32 v12, v12, v13"); e("v_and_b32 v12, 3, v12"); e("v_xor_b32 v12, v12, v11")
    e("v_and_b32 v13, 3, v1"); e("v_lshlrev_b32 v13, 12, v13")
    e("v_lshl_add_u32 v13, v10, 6, v13")
    e("v_lshl_add_u32 v18, v12, 4, v13")
    e("v_lshrrev_b32 v12, 2, v10"); e("v_and_b32 v13, 3, v10")
    e("v_lshrrev_b32 v17, 2, v1")
    e("v_lshl_add_u32 v26, v11, 3, v12"); e("v_mul_u32_u24 v26, 192, v26")
    e("v_and_b32 v27, 1, v13"); e("v_lshl_add_u32 v26, v27, 3, v26")
    e("v_mul_u32_u24 v27, 6, v17"); e("v_lshrrev_b32 v28, 1, v13"); e("v_add_u32 v27, v27, v28")
    e("v_and_b32 v28, 1, v11"); e("v_lshlrev_b32 v28, 1, v28")
    for jb in range(3):
        e(f"v_add_u32 v29, {2*jb}, v27"); e("v_xor_b32 v29, v29, v28")
        e(f"v_lshl_add_u32 v{19+jb}, v29, 4, v26")
    ACC = 32
    for i in range(96): e(f"v_mov_b32 v{ACC+i}, 0")
    XF = 128; WF = 144
    e("s_lshl_b32 s30, s22, 11")
    e("s_lshl_b32 s31, s29, 10"); e("s_add_u32 s31, s31, 16384")
    e("s_mov_b32 s32, 0"); e("s_mov_b32 s33, 0"); e("s_lshl_b32 s34, s25, 5")
    cnt=[0]
    def dma():
        cnt[0]+=1
        e("s_cmp_lt_i32 s35, 16"); e("s_cselect_b32 s10, s38, 0"); e("s_cselect_b32 s14, s39, 0")
        e("s_add_u32 s40, s30, s36"); e("s_add_u32 s41, s31, s36")
        e("s_mov_b32 m0, s40"); e("s_add_u32 s40, s40, 1024")
        e("buffer_load_dwordx4 v4, s[8:11], s32 offen lds")
        e("s_mov_b32 m0, s40"); e("s_nop 0")
        e("buffer_load_dwordx4 v5, s[8:11], s32 offen lds")
        e("s_mov_b32 m0, s41"); e("s_add_u32 s41, s41, 1024")
        e("buffer_load_dwordx4 v6, s[12:15], s33 offen lds")
        e("s_cmp_ge_u32 s22, 4"); e(f"s_cbranch_scc1 G1_sk{cnt[0]}")
        e("s_mov_b32 m0, s41"); e("s_nop 0")
        e("buffer_load_dwordx4 v7, s[12:15], s33 offen lds")
        lab(f"G1_sk{cnt[0]}")
        e("s_add_u32 s32, s32, 64"); e("s_add_u32 s33, s33, s34")
        e(f"s_add_u32 s36, s36, {STG}"); e(f"s_cmp_eq_u32 s36, {NB*STG}"); e("s_cselect_b32 s36, 0, s36")
    def waitv(k):
        cnt[0]+=1
        e("s_cmp_ge_u32 s22, 4"); e(f"s_cbranch_scc1 G1_wa{cnt[0]}")
        e(f"s_waitcnt vmcnt({4*k})"); e(f"s_branch G1_wb{cnt[0]}")
        lab(f"G1_wa{cnt[0]}"); e(f"s_waitcnt vmcnt({3*k})"); lab(f"G1_wb{cnt[0]}")
    def addrs():
        e("v_add_u32 v22, s37, v18"); e("v_add_u32 v23, s37, v19"); e("v_add_u32 v24, s37, v20"); e("v_add_u32 v25, s37, v21")
        e(f"s_add_u32 s37, s37, {STG}"); e(f"s_cmp_eq_u32 s37, {NB*STG}"); e("s_cselect_b32 s37, 0, s37")
    def reads(fs):
        L=[]
        xf = XF+40*fs; wf = WF+40*fs
        for mb in range(4): L.append(f"ds_read_b128 v[{xf+mb*4}:{xf+mb*4+3}], v22 offset:{mb*1024}")
        for s_ in range(2):
            for jb in range(3):
                for h in range(2):
                    r_ = wf + (s_*3+jb)*4 + h*2
                    L.append(f"ds_read_b64_tr_b16 v[{r_}:{r_+1}], v{23+jb} offset:{16384+s_*6144+h*768}")
        return L
    e("s_mov_b32 s35, -4"); e("s_mov_b32 s36, 0"); e("s_mov_b32 s37, 0")
    lab("G1_pro")
    dma()
    e("s_add_u32 s35, s35, 1"); e("s_cmp_lt_i32 s35, 0"); e("s_cbranch_scc1 G1_pro")
    waitv(3); addrs(); e("s_barrier")
    for r in reads(0): e(r)
    if 'clk' in X: e("s_memtime s[80:81]")
    lab("G1_loop")
    for fs in range(2):
        waitv(2); addrs(); e("s_barrier")
        dma()
        e("s_waitcnt lgkmcnt(0)")
        R = reads(1-fs); k = 0
        xf = XF+40*fs; wf = WF+40*fs
        for nb in range(6):
            for mb in range(4):
                a_ = ACC + (nb*4+mb)*4; w = wf+nb*4; x = xf+mb*4
                e(f"v_mfma_f32_16x16x32_bf16 v[{a_}:{a_+3}], v[{w}:{w+3}], v[{x}:{x+3}], v[{a_}:{a_+3}]")
                if k < 16 and (nb*4+mb) % 4 != 3: e(R[k]); k += 1
        e("s_add_u32 s35, s35, 1")
    e(f"s_cmp_lt_i32 s35, {NT}"); e("s_cbranch_scc1 G1_loop")
    e("s_waitcnt lgkmcnt(0)")
    if 'clk' in X: e("s_memtime s[82:83]")
    e("s_waitcnt vmcnt(0)")
    e("s_barrier")
    e("v_and_b32 v10, 15, v2"); e("v_lshrrev_b32 v11, 4, v2")
    e("v_and_b32 v12, 3, v1"); e("v_lshl_add_u32 v10, v12, 6, v10"); e("v_add_u32 v10, s28, v10")
    e("v_lshrrev_b32 v12, 2, v1"); e("v_mul_u32_u24 v12, 48, v12"); e("v_lshl_add_u32 v11, v11, 2, v12")
    for i in range(24):
        g = ACC + 4*i
        e(f"v_cvt_pk_bf16_f32 v{128+2*i}, v{g}, v{g+1}"); e(f"v_cvt_pk_bf16_f32 v{129+2*i}, v{g+2}, v{g+3}")
    e("v_subrev_u32 v10, s28, v10")
    TB = 98304
    e("s_cmp_lt_u32 s20, 10"); e("s_cbranch_scc1 G1_epq")
    srd(8, 18, 19, OH_SZ, OH_OFF)
    e("s_sub_u32 s24, s20, 10"); e("s_mul_i32 s24, s24, 192"); e("s_add_u32 s24, s24, 1280")
    e("s_mul_i32 s25, s28, 4352"); e("s_add_u32 s24, s24, s25")
    e("s_mov_b32 s25, 4352"); e("s_mov_b32 s26, 5462"); e("s_mov_b32 s27, 12"); e("s_mov_b32 s29, 208"); e("s_mov_b32 s30, 6")
    e("v_mul_u32_u24 v10, 208, v10"); e("v_lshl_add_u32 v10, v11, 1, v10"); e(f"v_add_u32 v10, {TB}, v10")
    e("v_mul_u32_u24 v12, 12288, v1"); e("v_lshl_add_u32 v12, v2, 3, v12")
    for i in range(24): e(f"ds_write_b64 v12, v[{128+2*i}:{129+2*i}] offset:{i*512}")
    e("s_mov_b32 s36, 0xbfb8aa3b"); e("s_mov_b32 s35, 0")
    e("s_waitcnt lgkmcnt(0)")
    lab("G1_eloop")
    for u in range(4):
        e(f"ds_read_b64 v[{32+4*u}:{33+4*u}], v12 offset:{u*512}"); e(f"ds_read_b64 v[{34+4*u}:{35+4*u}], v12 offset:{6144+u*512}")
    e("v_add_u32 v12, 2048, v12")
    e("s_waitcnt lgkmcnt(0)")
    G=48; U=64; T=80
    for u in range(4):
        for j in range(4):
            src = 32+4*u + (j>>1); usrc = 34+4*u + (j>>1); k=4*u+j
            if j&1: e(f"v_and_b32 v{G+k}, 0xffff0000, v{src}"); e(f"v_and_b32 v{U+k}, 0xffff0000, v{usrc}")
            else:   e(f"v_lshlrev_b32 v{G+k}, 16, v{src}"); e(f"v_lshlrev_b32 v{U+k}, 16, v{usrc}")
    for k in range(16): e(f"v_mul_f32 v{T+k}, s36, v{G+k}")
    for k in range(16): e(f"v_exp_f32 v{T+k}, v{T+k}")
    for k in range(16): e(f"v_add_f32 v{T+k}, 1.0, v{T+k}")
    for k in range(16): e(f"v_rcp_f32 v{T+k}, v{T+k}")
    for k in range(16): e(f"v_mul_f32 v{T+k}, v{G+k}, v{T+k}")
    for k in range(16): bf16r(f"v{T+k}", f"v{T+k}")
    for k in range(16): e(f"v_mul_f32 v{T+k}, v{T+k}, v{U+k}")
    for u in range(4):
        e(f"v_cvt_pk_bf16_f32 v{96+2*u}, v{T+4*u}, v{T+4*u+1}"); e(f"v_cvt_pk_bf16_f32 v{97+2*u}, v{T+4*u+2}, v{T+4*u+3}")
        e(f"ds_write_b64 v10, v[{96+2*u}:{97+2*u}] offset:{u*16*208}")
    e("v_add_u32 v10, 32, v10")
    e("s_add_u32 s35, s35, 1")
    e("s_cmp_lt_u32 s35, 3"); e("s_cbranch_scc1 G1_eloop")
    e("s_branch G1_copy")
    lab("G1_epq")
    srd(8, 18, 19, QKV_SZ, QKV_OFF)
    e("s_mul_i32 s24, s20, 384"); e("s_mul_i32 s25, s28, 3840"); e("s_add_u32 s24, s24, s25")
    e("s_mov_b32 s25, 3840"); e("s_mov_b32 s26, 2731"); e("s_mov_b32 s27, 24"); e("s_mov_b32 s29, 400"); e("s_mov_b32 s30, 12")
    e("v_mul_u32_u24 v10, 400, v10"); e("v_lshl_add_u32 v10, v11, 1, v10"); e(f"v_add_u32 v10, {TB-102400+61440}, v10")
    for mb in range(4):
        for nb in range(6):
            i = nb*4+mb
            e(f"ds_write_b64 v10, v[{128+2*i}:{129+2*i}] offset:{mb*6400+(nb//3)*192+(nb%3)*32}")
    lab("G1_copy")
    if 'clk' in X: e("s_memtime s[84:85]")
    e(f"s_mov_b32 s39, {TB}"); e("s_cmp_lt_u32 s20, 10"); e(f"s_cselect_b32 s31, {TB-102400+61440}, s39")
    e("s_waitcnt lgkmcnt(0)"); e("s_barrier")
    e("s_mov_b32 s35, 0")
    lab("G1_cloop")
    for u in range(3):
        e("v_mul_lo_u32 v10, v0, s26"); e("v_lshrrev_b32 v10, 16, v10")
        e("v_mul_lo_u32 v11, v10, s27"); e("v_sub_u32 v11, v0, v11")
        e("v_mul_lo_u32 v12, v10, s29"); e("v_lshl_add_u32 v12, v11, 4, v12"); e("v_add_u32 v12, s31, v12")
        e(f"ds_read_b128 v[{32+4*u}:{35+4*u}], v12")
        e(f"v_mul_lo_u32 v{13+u}, v10, s25"); e(f"v_lshl_add_u32 v{13+u}, v11, 4, v{13+u}")
        e("v_add_u32 v0, 512, v0")
    for u in range(3):
        e(f"s_waitcnt lgkmcnt({2-u})")
        e(f"buffer_store_dwordx4 v[{32+4*u}:{35+4*u}], v{13+u}, s[8:11], s24 offen")
    e("s_add_u32 s35, s35, 3"); e("s_cmp_lt_u32 s35, s30"); e("s_cbranch_scc1 G1_cloop")
    lab("G1_fin")
    if 'clk' in X:
        e("s_waitcnt vmcnt(0)")
        e("s_memtime s[66:67]"); e("s_memrealtime s[68:69]"); e("s_waitcnt lgkmcnt(0)")
        e("s_sub_u32 s66, s66, s60"); e("s_sub_u32 s80, s80, s60"); e("s_sub_u32 s82, s82, s60"); e("s_sub_u32 s84, s84, s60")
        srd(72, 64, 65, 256)
        e("v_mov_b32 v60, s80"); e("v_mov_b32 v61, s82"); e("v_mov_b32 v62, s84"); e("v_mov_b32 v63, s66"); e("v_mov_b32 v64, 0")
        e("s_cmp_lg_u32 s22, 0"); e("s_cbranch_scc1 G1_done")
        e("s_cmp_eq_u32 s2, 207"); e("s_cselect_b32 s70, 16, 0"); e("s_cbranch_scc1 G1_st")
        e("s_cmp_lg_u32 s2, 0"); e("s_cbranch_scc1 G1_done")
        lab("G1_st")
        e("buffer_store_dwordx4 v[60:63], v64, s[72:75], s70 offen")
    lab("G1_done"); e("s_endpgm")
    kdesc("g1_kernel", 208)

def gen_at():
    kstart("at_kernel")
    e("s_cmp_ge_u32 s2, 256"); e("s_cbranch_scc1 AT_done")
    e("s_load_dwordx2 s[18:19], s[0:1], 72")
    e("s_load_dwordx2 s[24:25], s[0:1], 16"); e("s_load_dwordx2 s[26:27], s[0:1], 48")
    e("s_lshl_b32 s3, s2, 8"); e("v_add_u32 v1, s3, v0")
    e("v_lshrrev_b32 v2, 5, v1"); e("v_and_b32 v3, 31, v1")
    e("v_mul_u32_u24 v3, 40, v3")
    e("s_waitcnt lgkmcnt(0)")
    srd(8, 18, 19, QKV_SZ, QKV_OFF); srd(12, 18, 19, OH_SZ, OH_OFF)
    e("v_mul_u32_u24 v4, 3840, v2"); e("v_add_u32 v4, v4, v3")
    Q=10; K=20; L=100; V=140
    for i in range(5): e(f"buffer_load_dwordx2 v[{Q+2*i}:{Q+2*i+1}], v4, s[8:11], 0 offen offset:{8*i}")
    for w in range(8):
        e(f"v_subrev_u32 v5, {2*w}, v2"); e("v_max_i32 v5, 0, v5")
        e("v_mul_u32_u24 v5, 3840, v5"); e(f"v_add_u32 v{110+w}, v5, v3")
        for i in range(5):
            e(f"buffer_load_dwordx2 v[{K+10*w+2*i}:{K+10*w+2*i+1}], v{110+w}, s[8:11], 0 offen offset:{1280+8*i}")
    for w in range(8):
        for i in range(5):
            e(f"buffer_load_dwordx2 v[{V+10*w+2*i}:{V+10*w+2*i+1}], v{110+w}, s[8:11], 0 offen offset:{2560+8*i}")
    e("s_mov_b32 s20, 0x3e64f92e"); e("s_mov_b32 s21, 0xce6e0000")
    for w in range(8): e(f"v_mov_b32 v{L+w}, 0")
    e("s_waitcnt vmcnt(40)")
    for i in range(10):
        for w in range(8): e(f"v_dot2_f32_bf16 v{L+w}, v{Q+i}, v{K+10*w+i}, v{L+w}")
    e("v_mov_b32 v5, s21")
    for w in range(8):
        bf16r(f"v{L+w}", f"v{L+w}"); e(f"v_mul_f32 v{L+w}, s20, v{L+w}"); bf16r(f"v{L+w}", f"v{L+w}")
        if w:
            e(f"v_cmp_le_u32 vcc, {2*w}, v2"); e("s_nop 1")
            e(f"v_cndmask_b32 v{L+w}, v5, v{L+w}, vcc")
    e(f"v_max_f32 v5, v{L}, v{L+1}")
    for w in range(2,8): e(f"v_max_f32 v5, v5, v{L+w}")
    e("s_mov_b32 s22, 0x3fb8aa3b")
    e("v_mov_b32 v6, 0")
    for w in range(8):
        e(f"v_sub_f32 v{L+w}, v{L+w}, v5"); e(f"v_mul_f32 v{L+w}, s22, v{L+w}"); e(f"v_exp_f32 v{L+w}, v{L+w}")
    for w in range(8): e(f"v_add_f32 v6, v6, v{L+w}")
    e("v_rcp_f32 v6, v6"); e("s_nop 0")
    for w in range(8):
        e(f"v_mul_f32 v{L+w}, v{L+w}, v6"); bf16r(f"v{L+w}", f"v{L+w}")
    e("s_waitcnt vmcnt(0)")
    O=120
    for d in range(20): e(f"v_mov_b32 v{O+d}, 0")
    for w in range(8):
        for i in range(10):
            e(f"v_lshlrev_b32 v5, 16, v{V+10*w+i}"); e(f"v_fmac_f32 v{O+2*i}, v{L+w}, v5")
            e(f"v_and_b32 v7, 0xffff0000, v{V+10*w+i}"); e(f"v_fmac_f32 v{O+2*i+1}, v{L+w}, v7")
    for i in range(10): e(f"v_cvt_pk_bf16_f32 v{Q+i}, v{O+2*i}, v{O+2*i+1}")
    e("v_mul_u32_u24 v4, 4352, v2"); e("v_add_u32 v4, v4, v3")
    for i in range(5): e(f"buffer_store_dwordx2 v[{Q+2*i}:{Q+2*i+1}], v4, s[12:15], 0 offen offset:{8*i}")
    lab("AT_done"); e("s_endpgm")
    kdesc("at_kernel", 224)

def gen_g2():
    kstart("g2_kernel")
    WB = 40960; STG = 20480
    e("s_cmp_ge_u32 s2, 256"); e("s_cbranch_scc1 G2_done")
    e("s_load_dwordx2 s[4:5], s[0:1], 16")
    e("s_load_dwordx2 s[6:7], s[0:1], 48")
    e("s_load_dwordx2 s[16:17], s[0:1], 0")
    e("s_load_dwordx2 s[18:19], s[0:1], 72")
    e("s_load_dwordx2 s[40:41], s[0:1], 56")
    e("s_and_b32 s3, s2, 7"); e("s_lshr_b32 s20, s2, 3")
    e("s_lshr_b32 s21, s20, 3"); e("s_lshl_b32 s3, s3, 2"); e("s_add_u32 s21, s21, s3")
    e("s_and_b32 s20, s20, 7")
    e("v_lshrrev_b32 v1, 6, v0"); e("v_and_b32 v2, 63, v0"); e("s_nop 0")
    e("v_readfirstlane_b32 s22, v1")
    e("s_waitcnt lgkmcnt(0)")
    srd(8, 18, 19, OH_SZ, OH_OFF)
    e("s_cmp_eq_u32 s22, 0"); e("s_cselect_b32 s26, s4, s6"); e("s_cselect_b32 s27, s5, s7")
    e("s_mov_b32 s39, 1536*1280"); e("s_cselect_b32 s28, 640*1280, s39")
    e("s_mov_b32 s12, s26"); e("s_and_b32 s13, s27, 0xffff"); e("s_mov_b32 s14, s28"); e("s_mov_b32 s15, 0x00020000")
    e("s_sub_u32 s29, s22, 1"); e("s_lshl_b32 s29, s29, 9")
    e("s_cmp_eq_u32 s22, 0"); e("s_cselect_b32 s29, 0, s29")
    e("s_add_u32 s30, s29, 640"); e("s_cmp_eq_u32 s22, 0"); e("s_cselect_b32 s30, 0, s30")
    e("s_cselect_b32 s31, 5, 4")
    e("s_lshl_b32 s32, s30, 1")
    e("s_lshl_b32 s36, s21, 6"); e("s_mul_i32 s36, s36, 4352"); e("s_add_u32 s32, s32, s36")
    e("s_mul_i32 s33, s29, 1280")
    e("s_mul_i32 s37, s20, 160"); e("s_add_u32 s33, s33, s37")
    STG = 10240
    e("v_bfe_u32 v184, v2, 4, 2"); e("v_lshlrev_b32 v184, 1, v184"); e("v_mov_b32 v185, 0x78")
    e("v_lshrrev_b32 v184, v184, v185"); e("v_and_b32 v184, 3, v184")
    e("v_and_b32 v185, 3, v2"); e("v_xor_b32 v184, v184, v185")
    e("v_lshrrev_b32 v185, 2, v2"); e("v_mul_u32_u24 v185, 4352, v185"); e("v_lshl_add_u32 v4, v184, 4, v185")
    for q in range(6):
        e(f"v_add_u32 v20, {64*q}, v2")
        e("v_mul_u32_u24 v21, 43691, v20"); e("v_lshrrev_b32 v21, 19, v21")
        e("v_mul_u32_u24 v22, 12, v21"); e("v_sub_u32 v22, v20, v22")
        e("v_bfe_u32 v23, v21, 3, 1"); e("v_lshlrev_b32 v23, 1, v23"); e("v_xor_b32 v22, v22, v23")
        e("v_mul_u32_u24 v21, 1280, v21")
        e(f"v_lshl_add_u32 v{6+q}, v22, 4, v21")
    e("v_mul_u32_u24 v29, 40960, v1")
    e("v_and_b32 v184, 15, v2"); e("v_lshrrev_b32 v185, 4, v2")
    e("v_lshrrev_b32 v186, 2, v184"); e("v_lshlrev_b32 v186, 1, v186"); e("v_mov_b32 v187, 0x78")
    e("v_lshrrev_b32 v186, v186, v187"); e("v_and_b32 v186, 3, v186"); e("v_xor_b32 v186, v186, v185")
    e("v_lshl_add_u32 v187, v184, 6, v29")
    e("v_lshl_add_u32 v18, v186, 4, v187")
    e("v_lshrrev_b32 v186, 2, v184"); e("v_and_b32 v187, 3, v184")
    e("v_lshl_add_u32 v26, v185, 3, v186"); e("v_mul_u32_u24 v26, 192, v26")
    e("v_and_b32 v27, 1, v187"); e("v_lshl_add_u32 v26, v27, 3, v26"); e("v_add_u32 v26, v26, v29")
    for jb in range(5):
        e("v_lshrrev_b32 v28, 1, v187"); e(f"v_add_u32 v27, {2*jb}, v28")
        e("v_and_b32 v28, 1, v185"); e("v_lshlrev_b32 v28, 1, v28"); e("v_xor_b32 v27, v27, v28")
        e(f"v_lshl_add_u32 v{20+jb}, v27, 4, v26")
    ACC=32
    for i in range(80): e(f"v_mov_b32 v{ACC+i}, 0")
    XF=112; WF=144
    e("s_mul_i32 s34, s22, 40960")
    e("s_lshl_b32 s31, s31, 2")
    e("s_mov_b32 s42, s10"); e("s_mov_b32 s43, s14")
    e("s_mov_b32 s35, -4"); e("s_mov_b32 s36, 0"); e("s_sub_u32 s44, s31, 4"); e("s_mov_b32 s46, 0")
    def dma2():
        e("s_cmp_lt_i32 s35, s44"); e("s_cselect_b32 s10, s42, 0"); e("s_cselect_b32 s14, s43, 0")
        e("s_add_u32 s45, s34, s36"); e("s_mov_b32 s38, s32")
        for q in range(4):
            e("s_mov_b32 m0, s45"); e("s_add_u32 s45, s45, 1024")
            e(f"buffer_load_dwordx4 v4, s[8:11], s38 offen lds")
            if q < 3: e(f"s_add_u32 s38, s38, {16*4352}")
        for q in range(6):
            e("s_mov_b32 m0, s45"); e("s_add_u32 s45, s45, 1024")
            e(f"buffer_load_dwordx4 v{6+q}, s[12:15], s33 offen lds")
        e("s_add_u32 s32, s32, 64"); e("s_add_u32 s33, s33, 32*1280")
        e(f"s_add_u32 s36, s36, {STG}"); e(f"s_cmp_eq_u32 s36, {4*STG}"); e("s_cselect_b32 s36, 0, s36")
    def addrs2():
        e("v_add_u32 v25, s46, v18")
        for jb in range(5): e(f"v_add_u32 v{184+jb}, s46, v{20+jb}")
        e(f"s_add_u32 s46, s46, {STG}"); e(f"s_cmp_eq_u32 s46, {4*STG}"); e("s_cselect_b32 s46, 0, s46")
    def reads2(fs):
        xf = (112,192)[fs]; wf = (144,208)[fs]; L=[]
        for mb in range(4): L.append(f"ds_read_b128 v[{xf+mb*4}:{xf+mb*4+3}], v25 offset:{mb*1024}")
        for jb in range(5):
            for h in range(2):
                r_ = wf+jb*4+h*2
                L.append(f"ds_read_b64_tr_b16 v[{r_}:{r_+1}], v{184+jb} offset:{4096+h*768}")
        return L
    lab("G2_pro")
    dma2()
    e("s_add_u32 s35, s35, 1"); e("s_cmp_lt_i32 s35, 0"); e("s_cbranch_scc1 G2_pro")
    addrs2(); e("s_waitcnt vmcnt(30)")
    for r in reads2(0): e(r)
    lab("G2_loop")
    for fs in range(2):
        addrs2(); e("s_waitcnt vmcnt(20) lgkmcnt(0)")
        R = reads2(1-fs); k = 0; xf = (112,192)[fs]; wf = (144,208)[fs]
        for nb in range(5):
            for mb in range(4):
                a_ = ACC+(nb*4+mb)*4; w = wf+nb*4; x = xf+mb*4
                e(f"v_mfma_f32_16x16x32_bf16 v[{a_}:{a_+3}], v[{w}:{w+3}], v[{x}:{x+3}], v[{a_}:{a_+3}]")
                if k < 14 and mb != 3: e(R[k]); k += 1
        dma2()
        e("s_add_u32 s35, s35, 1")
    e("s_cmp_lt_i32 s35, s31"); e("s_cbranch_scc1 G2_loop")
    e("s_waitcnt lgkmcnt(0)")
    e("s_waitcnt vmcnt(0)"); e("s_nop 7")
    e("v_lshl_add_u32 v10, v2, 4, v29")
    for i in range(20): e(f"ds_write_b128 v10, v[{ACC+4*i}:{ACC+4*i+3}] offset:{i*1024}")
    srd(8, 16, 17, XN_SZ); srd(12, 40, 41, XN_SZ)
    e("v_and_b32 v11, 15, v2"); e("v_lshrrev_b32 v12, 4, v2")
    e("s_lshl_b32 s36, s21, 6"); e("s_lshl_b32 s37, s22, 4"); e("s_add_u32 s36, s36, s37")
    e("v_add_u32 v11, s36, v11"); e("v_mul_u32_u24 v11, 1280, v11")
    e("s_mul_i32 s37, s20, 80"); e("v_lshl_add_u32 v12, v12, 2, s37"); e("v_lshl_add_u32 v11, v12, 1, v11")
    e("v_lshlrev_b32 v10, 4, v2"); e("s_lshl_b32 s37, s22, 10"); e("v_add_u32 v10, s37, v10")
    e(f"v_add_u32 v13, {2*WB}, v10")
    e("s_mov_b32 s35, 0")
    e("s_waitcnt lgkmcnt(0)"); e("s_barrier")
    lab("G2_eloop")
    e("buffer_load_dwordx2 v[4:5], v11, s[8:11], 0 offen")
    e("ds_read_b128 v[32:35], v10"); e(f"ds_read_b128 v[36:39], v10 offset:{WB}")
    e("ds_read_b128 v[40:43], v13"); e(f"ds_read_b128 v[44:47], v13 offset:{WB}")
    e("v_add_u32 v10, 4096, v10"); e("v_add_u32 v13, 4096, v13")
    e("s_waitcnt vmcnt(0) lgkmcnt(0)")
    e("v_lshlrev_b32 v6, 16, v4"); e("v_and_b32 v7, 0xffff0000, v4")
    e("v_lshlrev_b32 v8, 16, v5"); e("v_and_b32 v9, 0xffff0000, v5")
    for j in range(4):
        e(f"v_add_f32 v{36+j}, v{36+j}, v{40+j}"); e(f"v_add_f32 v{36+j}, v{36+j}, v{44+j}")
        bf16r(f"v{36+j}", f"v{36+j}"); bf16r(f"v{32+j}", f"v{32+j}")
        e(f"v_add_f32 v{32+j}, v{6+j}, v{32+j}"); bf16r(f"v{32+j}", f"v{32+j}")
        e(f"v_add_f32 v{32+j}, v{32+j}, v{36+j}")
    e("v_cvt_pk_bf16_f32 v32, v32, v33"); e("v_cvt_pk_bf16_f32 v33, v34, v35")
    e("buffer_store_dwordx2 v[32:33], v11, s[12:15], 0 offen")
    e("v_add_u32 v11, 32, v11")
    e("s_add_u32 s35, s35, 1"); e("s_cmp_lt_u32 s35, 5"); e("s_cbranch_scc1 G2_eloop")
    lab("G2_done"); e("s_endpgm")
    kdesc("g2_kernel", 232)

HEAD = open("parallel_sum__sliding_local_dilated__glu_gated_swiglu__prompt.s.ref").read().split("; @launch")[0]
gen_ln(); gen_g1(); gen_at(); gen_g2()
txt = HEAD + """; @launch kernel=ln_kernel grid=(512,1,1) block=(256,1,1) lds=0
; @launch kernel=g1_kernel grid=(208,1,1) block=(512,1,1) lds=163840
; @launch kernel=at_kernel grid=(256,1,1) block=(256,1,1) lds=0
; @launch kernel=g2_kernel grid=(256,1,1) block=(256,1,1) lds=163840
.amdgcn_target "amdgcn-amd-amdhsa--gfx950"
.text
""" + "\n".join(OUT) + '\n.section .rodata,"a"\n' + "\n".join(DESCS) + "\n"
open(os.environ.get("GO","parallel_sum__sliding_local_dilated__glu_gated_swiglu__prompt.s"), "w").write(txt)
```

```python
import sys, os
X=os.environ.get("GX","")
OUT = []
def e(s): OUT.append("    " + s)
def lab(s): OUT.append(s + ":")

XP_OFF, WQ_OFF, WF_OFF, W2_OFF, AP_OFF = 0x0, 0x300000, 0x600000, 0xA00000, 0xD00000
XP_SZ, WQ_SZ, WF_SZ, W2_SZ, AP_SZ = 128*20*1024, 8*20*15*1024, 16*20*12*1024, 8*68*5*1024, 128*68*1024
WS_SZ = AP_OFF + AP_SZ
X_SZ = 2048*1280

def srd(d, lo, hi, size, add=0):
    if add:
        e(f"s_add_u32 s{d}, s{lo}, {add:#x}")
        e(f"s_addc_u32 s{d+1}, s{hi}, 0")
    else:
        e(f"s_mov_b32 s{d}, s{lo}")
        e(f"s_mov_b32 s{d+1}, s{hi}")
    e(f"s_and_b32 s{d+1}, s{d+1}, 0xffff")
    e(f"s_mov_b32 s{d+2}, {size:#x}")
    e(f"s_mov_b32 s{d+3}, 0x00020000")

def kstart(name):
    OUT.append(f".globl {name}\n.p2align 8\n.type {name},@function\n{name}:")

DESCS = []
def kdesc(name, vgpr, sgpr=100):
    acc = ((vgpr + 3)//4)*4
    DESCS.append(f""".p2align 6
.amdhsa_kernel {name}
  .amdhsa_next_free_vgpr {vgpr}
  .amdhsa_next_free_sgpr {sgpr}
  .amdhsa_accum_offset {acc}
  .amdhsa_group_segment_fixed_size 0
  .amdhsa_kernarg_size 80
  .amdhsa_user_sgpr_count 2
  .amdhsa_user_sgpr_kernarg_segment_ptr 1
  .amdhsa_system_sgpr_workgroup_id_x 1
.end_amdhsa_kernel""")

def bf16r(dst, src):
    e(f"v_cvt_pk_bf16_f32 {dst}, {src}, {src}")
    e(f"v_lshlrev_b32 {dst}, 16, {dst}")

def divc(q, r, src, d, maxv):
    for sh in range(8, 25):
        m = ((1 << sh) + d - 1)//d
        if m >= (1 << 24) or m*(maxv-1) >= (1 << 32): continue
        if all((i*m) >> sh == i//d for i in range(maxv)): break
    else: raise Exception("no magic")
    e(f"v_mul_u32_u24 {q}, {m}, {src}"); e(f"v_lshrrev_b32 {q}, {sh}, {q}")
    if r:
        e(f"v_mul_u32_u24 {r}, {d}, {q}"); e(f"v_sub_u32 {r}, {src}, {r}")

def gen_prep():
    kstart("prep_kernel")
    e("s_cmp_ge_u32 s2, 408"); e("s_cbranch_scc1 P_done")
    e("s_load_dwordx2 s[6:7], s[0:1], 72")
    e("s_cmp_ge_u32 s2, 128"); e("s_cbranch_scc1 P_pack")
    e("s_load_dwordx2 s[4:5], s[0:1], 0")
    e("v_lshrrev_b32 v1, 4, v0")
    e("v_and_b32 v2, 15, v0")
    e("s_lshl_b32 s3, s2, 4")
    e("v_add_u32 v3, s3, v1")
    e("v_mul_u32_u24 v3, 1280, v3"); e("v_lshl_add_u32 v3, v2, 4, v3")
    e("v_lshrrev_b32 v4, 2, v2"); e("v_lshlrev_b32 v4, 10, v4"); e("v_and_b32 v5, 3, v2"); e("v_lshl_add_u32 v4, v5, 8, v4")
    e("v_lshl_add_u32 v4, v1, 4, v4")
    e("s_mul_i32 s3, s2, 20480")
    e("s_waitcnt lgkmcnt(0)")
    srd(8, 4, 5, X_SZ)
    srd(12, 6, 7, XP_SZ, XP_OFF)
    for j in range(5): e(f"buffer_load_dwordx4 v[{8+4*j}:{11+4*j}], v3, s[8:11], 0 offen offset:{256*j}")
    e("s_waitcnt vmcnt(0)")
    for i in range(20):
        e(f"v_lshlrev_b32 v{32+2*i}, 16, v{8+i}")
        e(f"v_and_b32 v{33+2*i}, 0xffff0000, v{8+i}")
    def rowsum(v):
        for k in (8,4,2,1):
            e("s_nop 1")
            e(f"v_add_f32_dpp {v}, {v}, {v} row_ror:{k} row_mask:0xf bank_mask:0xf")
    e("v_add_f32 v30, v32, v33"); e("v_add_f32 v31, v34, v35")
    for i in range(4,40,2): e(f"v_add_f32 v30, v30, v{32+i}"); e(f"v_add_f32 v31, v31, v{33+i}")
    e("v_add_f32 v30, v30, v31")
    rowsum("v30")
    e("v_mov_b32 v72, 0x3acccccd")
    e("v_mul_f32 v73, v30, v72")
    e("v_mov_b32 v30, 0"); e("v_mov_b32 v31, 0")
    for i in range(0,40,2):
        e(f"v_sub_f32 v74, v{32+i}, v73"); e(f"v_sub_f32 v75, v{33+i}, v73")
        e("v_fmac_f32 v30, v74, v74"); e("v_fmac_f32 v31, v75, v75")
    e("v_add_f32 v30, v30, v31")
    rowsum("v30")
    e("v_mul_f32 v75, v30, v72")
    bf16r("v73", "v73"); bf16r("v75", "v75")
    e("v_add_f32 v75, 0x3727c5ac, v75")
    bf16r("v75", "v75")
    e("v_sqrt_f32 v75, v75"); e("s_nop 0")
    bf16r("v75", "v75")
    e("v_rcp_f32 v76, v75"); e("s_nop 0")
    for i in range(40):
        e(f"v_sub_f32 v{32+i}, v{32+i}, v73")
        bf16r(f"v{32+i}", f"v{32+i}")
        e(f"v_mul_f32 v77, v{32+i}, v76")
        e(f"v_fma_f32 v78, -v77, v75, v{32+i}")
        e(f"v_fma_f32 v{32+i}, v78, v76, v77")
    for i in range(20): e(f"v_cvt_pk_bf16_f32 v{8+i}, v{32+2*i}, v{33+2*i}")
    for j in range(5):
        e(f"buffer_store_dwordx4 v[{8+4*j}:{11+4*j}], v4, s[12:15], s3 offen")
        if j < 4: e("s_add_u32 s3, s3, 4096")
    e("s_endpgm")
    lab("P_pack")
    e("s_sub_u32 s3, s2, 128")
    e("s_mov_b32 s40, 0x05040100"); e("s_mov_b32 s41, 0x07060302")
    e("s_cmp_ge_u32 s3, 195"); e("s_cbranch_scc1 P_w2o")
    e("s_cmp_ge_u32 s3, 75"); e("s_cbranch_scc1 P_w13")
    e("s_load_dwordx2 s[4:5], s[0:1], 8")
    e("s_lshl_b32 s3, s3, 8"); e("v_add_u32 v1, s3, v0")
    divc("v2", "v3", "v1", 240, 19200)
    divc("v4", "v5", "v3", 80, 240)
    divc("v6", "v7", "v5", 10, 80)
    e("v_mul_u32_u24 v4, 5, v4"); e("v_lshrrev_b32 v8, 1, v7"); e("v_add_u32 v4, v4, v8")
    e("v_lshrrev_b32 v8, 2, v2"); e("v_mul_u32_u24 v6, 20, v6"); e("v_add_u32 v6, v6, v8")
    e("v_mul_u32_u24 v6, 15, v6"); e("v_add_u32 v6, v6, v4")
    e(f"s_mov_b32 s20, {WQ_OFF}"); e("s_mov_b32 s21, 3840"); e(f"s_mov_b32 s22, {640*3840}")
    e("v_mul_u32_u24 v10, 8*3840, v2"); e("v_lshl_add_u32 v10, v3, 4, v10"); e("v_add_u32 v11, 4*3840, v10")
    e("s_branch P_go")
    lab("P_w13")
    e("s_sub_u32 s3, s3, 75"); e("s_cmp_ge_u32 s3, 60"); e("s_cselect_b32 s23, 3, 0"); e("s_cselect_b32 s24, 40, 32"); e("s_cselect_b32 s25, 60, 0")
    e("s_sub_u32 s3, s3, s25")
    e("s_load_dwordx2 s[4:5], s[0:1], s24")
    e("s_lshl_b32 s3, s3, 8"); e("v_add_u32 v1, s3, v0")
    divc("v2", "v3", "v1", 192, 15360)
    divc("v6", "v5", "v3", 12, 192)
    divc("v4", "v7", "v5", 6, 12)
    e("v_mul_u32_u24 v4, 6, v4"); e("v_lshrrev_b32 v8, 1, v7"); e("v_add_u32 v4, v4, v8"); e("v_add_u32 v4, s23, v4")
    e("v_lshrrev_b32 v8, 2, v2"); e("v_mul_u32_u24 v6, 20, v6"); e("v_add_u32 v6, v6, v8")
    e("v_mul_u32_u24 v6, 12, v6"); e("v_add_u32 v6, v6, v4")
    e(f"s_mov_b32 s20, {WF_OFF}"); e("s_mov_b32 s21, 3072"); e(f"s_mov_b32 s22, {640*3072}")
    e("v_mul_u32_u24 v10, 8*3072, v2"); e("v_lshl_add_u32 v10, v3, 4, v10"); e("v_add_u32 v11, 4*3072, v10")
    e("s_branch P_go")
    lab("P_w2o")
    e("s_sub_u32 s3, s3, 195"); e("s_cmp_ge_u32 s3, 25"); e("s_cselect_b32 s24, 48, 16"); e("s_cselect_b32 s25, 25, 0"); e("s_cselect_b32 s26, 1, 0")
    e("s_sub_u32 s3, s3, s25")
    e("s_load_dwordx2 s[4:5], s[0:1], s24")
    e("s_lshl_b32 s3, s3, 8"); e("v_add_u32 v1, s3, v0")
    divc("v2", "v3", "v1", 80, 15360)
    divc("v6", "v7", "v3", 10, 80)
    e("v_lshrrev_b32 v4, 1, v7")
    e("v_lshrrev_b32 v8, 2, v2")
    e("s_mul_i32 s27, s26, 20")
    e("v_mul_u32_u24 v6, 68, v6"); e("v_add_u32 v6, v6, v8"); e("v_add_u32 v6, s27, v6")
    e("v_mul_u32_u24 v6, 5, v6"); e("v_add_u32 v6, v6, v4")
    e(f"s_mov_b32 s20, {W2_OFF}"); e("s_mov_b32 s21, 1280"); e(f"s_mov_b32 s22, {640*1280}")
    e("s_cmp_eq_u32 s26, 0"); e("s_cbranch_scc1 P_wo")
    e(f"s_mov_b32 s22, {1536*1280}")
    divc("v12", "v13", "v8", 3, 48)
    e("v_and_b32 v14, 3, v2")
    e("v_mul_u32_u24 v12, 96, v12"); e("v_lshl_add_u32 v12, v14, 2, v12")
    e("v_cmp_eq_u32 vcc, 1, v13"); e("v_mov_b32 v15, 48"); e("v_cndmask_b32 v14, 0, v15, vcc")
    e("v_cmp_eq_u32 vcc, 2, v13"); e("v_mov_b32 v16, 32"); e("v_cndmask_b32 v14, v14, v16, vcc")
    e("v_mov_b32 v16, 16"); e("v_cndmask_b32 v15, v16, v15, vcc")
    e("v_add_u32 v12, v12, v14")
    e("v_add_u32 v13, v12, v15")
    e("v_mul_u32_u24 v10, 1280, v12"); e("v_lshl_add_u32 v10, v3, 4, v10")
    e("v_mul_u32_u24 v11, 1280, v13"); e("v_lshl_add_u32 v11, v3, 4, v11")
    e("s_branch P_go")
    lab("P_wo")
    e("v_mul_u32_u24 v10, 8*1280, v2"); e("v_lshl_add_u32 v10, v3, 4, v10"); e("v_add_u32 v11, 4*1280, v10")
    lab("P_go")
    e("v_lshlrev_b32 v6, 10, v6"); e("v_and_b32 v8, 3, v2"); e("v_lshl_add_u32 v6, v8, 8, v6")
    e("v_and_b32 v8, 1, v7"); e("v_lshl_add_u32 v6, v8, 7, v6"); e("v_add_u32 v6, s20, v6")
    e("s_lshl_b32 s24, s21, 1"); e("s_add_u32 s25, s24, s21")
    e("s_waitcnt lgkmcnt(0)")
    e("s_mov_b32 s8, s4"); e("s_and_b32 s9, s5, 0xffff"); e("s_mov_b32 s10, s22"); e("s_mov_b32 s11, 0x00020000")
    srd(12, 6, 7, WS_SZ)
    for i in range(8):
        so = ("0","s21","s24","s25")[i&3]
        e(f"buffer_load_dwordx4 v[{16+4*i}:{19+4*i}], v{10+(i>>2)}, s[8:11], {so} offen")
    e("s_waitcnt vmcnt(0)")
    for c_ in range(8):
        for q in range(4):
            e(f"v_perm_b32 v{48+4*c_+q}, v{16+4*(2*q+1)+(c_>>1)}, v{16+4*(2*q)+(c_>>1)}, s{40+(c_&1)}")
    for c_ in range(8):
        e(f"buffer_store_dwordx4 v[{48+4*c_}:{51+4*c_}], v6, s[12:15], 0 offen offset:{16*c_}")
    lab("P_done"); e("s_endpgm")
    kdesc("prep_kernel", 80)

STG = 28672; NB = 5; NT = 20
def gen_g1():
    kstart("g1_kernel")
    e("s_cmp_ge_u32 s2, 256"); e("s_cbranch_scc1 G1_done")
    e("s_load_dwordx2 s[18:19], s[0:1], 72")
    e("s_and_b32 s3, s2, 7"); e("s_lshr_b32 s20, s2, 3")
    e("v_lshrrev_b32 v1, 6, v0"); e("v_and_b32 v2, 63, v0"); e("s_nop 0")
    e("v_readfirstlane_b32 s22, v1")
    e("v_lshlrev_b32 v4, 4, v2")
    e("s_waitcnt lgkmcnt(0)")
    srd(8, 18, 19, XP_SZ, XP_OFF)
    e("s_mov_b32 s38, s10")
    e("s_mov_b32 s35, -4"); e("s_mov_b32 s36, 0"); e("s_mov_b32 s37, 0")
    e("s_cmp_ge_u32 s20, 16"); e("s_cbranch_scc1 G1_qkv")
    cnt=[0]
    srd(12, 18, 19, WF_SZ, WF_OFF)
    e("s_mov_b32 s39, s14")
    e("s_lshl_b32 s24, s3, 1"); e("s_and_b32 s25, s20, 1"); e("s_add_u32 s24, s24, s25")
    e("s_lshr_b32 s21, s20, 1")
    e("s_lshl_b32 s25, s21, 4"); e("s_add_u32 s25, s25, s22"); e("s_mul_i32 s32, s25, 20480")
    e("s_mul_i32 s33, s24, 245760"); e("s_lshl_b32 s25, s22, 10"); e("s_add_u32 s33, s33, s25")
    e("s_lshl_b32 s30, s22, 10")
    def dmaF():
        cnt[0]+=1
        e("s_cmp_lt_i32 s35, 16"); e("s_cselect_b32 s10, s38, 0"); e("s_cselect_b32 s14, s39, 0")
        e("s_add_u32 s40, s30, s36")
        e("s_mov_b32 m0, s40"); e("s_add_u32 s40, s40, 8192"); e(f"s_add_u32 s41, s32, {8*20480}")
        e("buffer_load_dwordx4 v4, s[8:11], s32 offen lds")
        e("s_mov_b32 m0, s40"); e("s_add_u32 s40, s40, 8192")
        e("buffer_load_dwordx4 v4, s[8:11], s41 offen lds")
        e("s_mov_b32 m0, s40"); e("s_add_u32 s40, s40, 8192"); e("s_add_u32 s41, s33, 8192")
        e("buffer_load_dwordx4 v4, s[12:15], s33 offen lds")
        e("s_cmp_ge_u32 s22, 4"); e(f"s_cbranch_scc1 G1_sk{cnt[0]}")
        e("s_mov_b32 m0, s40"); e("s_nop 0")
        e("buffer_load_dwordx4 v4, s[12:15], s41 offen lds")
        lab(f"G1_sk{cnt[0]}")
        e("s_add_u32 s32, s32, 1024"); e("s_add_u32 s33, s33, 12288")
        e(f"s_add_u32 s36, s36, {STG}"); e(f"s_cmp_eq_u32 s36, {NB*STG}"); e("s_cselect_b32 s36, 0, s36")
    def waitF(k):
        cnt[0]+=1
        e("s_cmp_ge_u32 s22, 4"); e(f"s_cbranch_scc1 G1_wa{cnt[0]}")
        e(f"s_waitcnt vmcnt({4*k})"); e(f"s_branch G1_wb{cnt[0]}")
        lab(f"G1_wa{cnt[0]}"); e(f"s_waitcnt vmcnt({3*k})"); lab(f"G1_wb{cnt[0]}")
    e("v_and_b32 v10, 3, v1"); e("v_lshl_add_u32 v18, v10, 12, v4")
    e("v_lshrrev_b32 v10, 2, v1"); e("v_mul_u32_u24 v10, 6144, v10"); e("v_add_u32 v19, v10, v4"); e("v_add_u32 v19, 16384, v19")
    def addrs():
        e("v_add_u32 v22, s37, v18"); e("v_add_u32 v23, s37, v19"); e("v_add_u32 v24, s37, v4")
        e(f"s_add_u32 s37, s37, {STG}"); e(f"s_cmp_eq_u32 s37, {NB*STG}"); e("s_cselect_b32 s37, 0, s37")
    ACC = 32
    def mainloop(tag, dma, wait, Ard, Wrd, pairs, FR):
        na, nw = len(Ard), len(Wrd); fsz = 4*(na+nw)
        def reads(fs):
            L=[]
            b = FR + fsz*fs
            for i,(v,o) in enumerate(Ard): L.append(f"ds_read_b128 v[{b+4*i}:{b+4*i+3}], {v} offset:{o}")
            for i,(v,o) in enumerate(Wrd): L.append(f"ds_read_b128 v[{b+4*na+4*i}:{b+4*na+4*i+3}], {v} offset:{o}")
            return L
        for i in range(4*len(pairs)): e(f"v_mov_b32 v{ACC+i}, 0")
        lab(f"{tag}_pro")
        dma()
        e("s_add_u32 s35, s35, 1"); e("s_cmp_lt_i32 s35, 0"); e(f"s_cbranch_scc1 {tag}_pro")
        wait(3); addrs(); e("s_barrier")
        for r in reads(0): e(r)
        lab(f"{tag}_loop")
        for fs in range(2):
            wait(2); addrs(); e("s_barrier")
            dma()
            e("s_waitcnt lgkmcnt(0)")
            R = reads(1-fs); k = 0
            b = FR + fsz*fs
            for p,(ai,wi) in enumerate(pairs):
                a_ = ACC+4*p; w = b+4*na+4*wi; x = b+4*ai
                e(f"v_mfma_f32_16x16x32_bf16 v[{a_}:{a_+3}], v[{w}:{w+3}], v[{x}:{x+3}], v[{a_}:{a_+3}]")
                if k < len(R) and (p % 4 != 3 or len(pairs)-p <= len(R)-k): e(R[k]); k += 1
            while k < len(R): e(R[k]); k += 1
            e("s_add_u32 s35, s35, 1")
        e(f"s_cmp_lt_i32 s35, {NT}"); e(f"s_cbranch_scc1 {tag}_loop")
        e("s_waitcnt lgkmcnt(0)")
        e("s_waitcnt vmcnt(0)")
    pairsF = [(mb, nb) for nb in range(6) for mb in range(4)]
    mainloop("G1F", dmaF, waitF, [("v22", 1024*i) for i in range(4)], [("v23", 1024*i) for i in range(6)], pairsF, 128)
    srd(8, 18, 19, AP_SZ, AP_OFF)
    e("s_lshl_b32 s25, s21, 4"); e("s_and_b32 s26, s22, 3"); e("s_lshl_b32 s26, s26, 2"); e("s_add_u32 s25, s25, s26")
    e("s_mul_i32 s25, s25, 69632")
    e("s_mul_i32 s26, s24, 3072"); e("s_add_u32 s25, s25, s26"); e("s_add_u32 s25, s25, 20480")
    e("s_lshr_b32 s26, s22, 2")
    e("s_lshl_b32 s27, s26, 10"); e("s_add_u32 s27, s27, s25")
    e("s_lshl_b32 s28, s26, 3"); e("s_add_u32 s28, s28, s25"); e("s_add_u32 s28, s28, 2048")
    e("s_mov_b32 s36, 0xbfb8aa3b")
    e("s_nop 4")
    T = 128
    for mb in range(4):
        idx = []
        for b in range(3):
            for j in range(4): idx.append((ACC+(b*4+mb)*4+j, ACC+((b+3)*4+mb)*4+j))
        for k,(g,u) in enumerate(idx): bf16r(f"v{g}", f"v{g}")
        for k,(g,u) in enumerate(idx): e(f"v_mul_f32 v{T+k}, s36, v{g}")
        for k in range(12): e(f"v_exp_f32 v{T+k}, v{T+k}")
        for k,(g,u) in enumerate(idx): bf16r(f"v{u}", f"v{u}")
        for k in range(12): e(f"v_add_f32 v{T+k}, 1.0, v{T+k}")
        for k in range(12): e(f"v_rcp_f32 v{T+k}, v{T+k}")
        e("s_nop 0")
        for k,(g,u) in enumerate(idx): e(f"v_mul_f32 v{T+k}, v{g}, v{T+k}")
        for k in range(12): bf16r(f"v{T+k}", f"v{T+k}")
        for k,(g,u) in enumerate(idx): e(f"v_mul_f32 v{T+k}, v{T+k}, v{u}")
        O = 144+8*mb
        for k in range(6): e(f"v_cvt_pk_bf16_f32 v{O+k}, v{T+2*k}, v{T+2*k+1}")
        e(f"buffer_store_dwordx4 v[{O}:{O+3}], v4, s[8:11], s27 offen")
        e(f"buffer_store_dwordx2 v[{O+4}:{O+5}], v4, s[8:11], s28 offen")
        if mb < 3: e("s_add_u32 s27, s27, 69632"); e("s_add_u32 s28, s28, 69632")
    e("s_endpgm")
    lab("G1_qkv")
    srd(12, 18, 19, WQ_SZ, WQ_OFF)
    e("s_mov_b32 s39, s14")
    e("s_sub_u32 s21, s20, 16")
    e("s_lshl_b32 s25, s21, 3"); e("s_add_u32 s25, s25, s22"); e("s_sub_u32 s25, s25, 1"); e("s_max_i32 s25, s25, 0")
    e("s_mul_i32 s32, s25, 20480")
    e("s_mul_i32 s33, s3, 307200"); e("s_lshl_b32 s25, s22, 10"); e("s_add_u32 s33, s33, s25")
    e("s_lshl_b32 s25, s21, 3"); e("s_add_u32 s25, s25, 7"); e("s_mul_i32 s25, s25, 20480")
    e("s_add_u32 s26, s33, 7168")
    e("s_mov_b32 s42, 15360"); e("s_cmp_eq_u32 s22, 0"); e("s_cselect_b32 s34, s25, s26"); e("s_cselect_b32 s42, 1024, s42")
    e("s_cselect_b32 s44, s8, s12"); e("s_cselect_b32 s45, s9, s13"); e("s_cselect_b32 s43, s38, s39"); e("s_mov_b32 s47, 0x00020000")
    e("s_lshl_b32 s30, s22, 10")
    e("s_add_u32 s31, s30, 9216")
    e("s_add_u32 s25, s31, 7168"); e("s_cmp_eq_u32 s22, 0"); e("s_cselect_b32 s29, 8192, s25")
    def dmaQ():
        e("s_cmp_lt_i32 s35, 16"); e("s_cselect_b32 s10, s38, 0"); e("s_cselect_b32 s14, s39, 0"); e("s_cselect_b32 s46, s43, 0")
        e("s_add_u32 s40, s30, s36"); e("s_mov_b32 m0, s40"); e("s_add_u32 s40, s31, s36")
        e("buffer_load_dwordx4 v4, s[8:11], s32 offen lds")
        e("s_mov_b32 m0, s40"); e("s_add_u32 s40, s29, s36")
        e("buffer_load_dwordx4 v4, s[12:15], s33 offen lds")
        e("s_mov_b32 m0, s40"); e("s_nop 0")
        e("buffer_load_dwordx4 v4, s[44:47], s34 offen lds")
        e("s_add_u32 s32, s32, 1024"); e("s_add_u32 s33, s33, 15360"); e("s_add_u32 s34, s34, s42")
        e(f"s_add_u32 s36, s36, {STG}"); e(f"s_cmp_eq_u32 s36, {NB*STG}"); e("s_cselect_b32 s36, 0, s36")
    def waitQ(k): e(f"s_waitcnt vmcnt({3*k})")
    e("v_lshrrev_b32 v10, 1, v1"); e("v_lshlrev_b32 v10, 11, v10"); e("v_add_u32 v18, v10, v4"); e("v_add_u32 v18, 1024, v18")
    e("v_and_b32 v10, 1, v1"); e("v_lshlrev_b32 v10, 13, v10"); e("v_add_u32 v19, v10, v4"); e("v_add_u32 v19, 9216, v19")
    e("s_cmp_eq_u32 s22, 1"); e("s_cbranch_scc1 G1_v2")
    e("s_cmp_eq_u32 s22, 2"); e("s_cbranch_scc1 G1_v3")
    e("s_and_b32 s25, s22, 1"); e("s_cmp_eq_u32 s25, 1"); e("s_cbranch_scc1 G1_v1")
    def qepi(nw, halo):
        e("s_barrier")
        e("v_and_b32 v10, 15, v2"); e("v_mul_u32_u24 v10, 520, v10"); e("v_lshrrev_b32 v11, 4, v2"); e("v_lshl_add_u32 v12, v11, 3, v10")
        e("v_and_b32 v11, 1, v1"); e("v_lshl_add_u32 v12, v11, 8, v12")
        e("v_lshrrev_b32 v11, 1, v1"); e("v_mul_u32_u24 v11, 16640, v11"); e("v_add_u32 v10, v12, v11"); e("v_add_u32 v10, 8320, v10")
        p = 0
        for wi in range(nw):
            for mb in range(2):
                g = ACC+4*p; p += 1
                e(f"v_cvt_pk_bf16_f32 v{g}, v{g}, v{g+1}"); e(f"v_cvt_pk_bf16_f32 v{g+1}, v{g+2}, v{g+3}")
                e(f"ds_write_b64 v10, v[{g}:{g+1}] offset:{mb*8320+wi*32}")
        for wi in halo:
            g = ACC+4*p; p += 1
            e(f"v_cvt_pk_bf16_f32 v{g}, v{g}, v{g+1}"); e(f"v_cvt_pk_bf16_f32 v{g+1}, v{g+2}, v{g+3}")
            e(f"ds_write_b64 v12, v[{g}:{g+1}] offset:{wi*32}")
        e("s_branch G1_att")
    A2 = [("v22", 0), ("v22", 1024)]
    def W(n): return [("v23", 1024*i) for i in range(n)]
    mainloop("G1Q0", dmaQ, waitQ, A2, W(8), [(mb,wi) for wi in range(8) for mb in range(2)], 128); qepi(8, [])
    lab("G1_v1")
    mainloop("G1Q1", dmaQ, waitQ, A2, W(7), [(mb,wi) for wi in range(7) for mb in range(2)], 128); qepi(7, [])
    lab("G1_v2")
    mainloop("G1Q2", dmaQ, waitQ, A2+[("v24",0)], W(7), [(mb,wi) for wi in range(7) for mb in range(2)]+[(2,wi) for wi in range(7)], 128); qepi(7, list(range(7)))
    lab("G1_v3")
    mainloop("G1Q3", dmaQ, waitQ, A2+[("v24",0)], W(8), [(mb,wi) for wi in range(8) for mb in range(2)]+[(2,wi) for wi in (5,6,7)], 128); qepi(8, [5,6,7])
    lab("G1_att")
    srd(12, 18, 19, AP_SZ, AP_OFF)
    e("s_and_b32 s24, s22, 3"); e("s_lshr_b32 s25, s22, 2")
    e("s_lshl_b32 s26, s25, 6"); e("v_add_u32 v3, s26, v2")
    e("s_lshl_b32 s27, s21, 7"); e("v_add_u32 v2, s27, v3")
    e("s_mul_i32 s26, s24, 40"); e("s_add_u32 s26, s26, 16*520")
    e("v_mul_u32_u24 v4, 520, v3"); e("v_add_u32 v4, s26, v4")
    e("v_subrev_u32 v5, 4160, v4")
    e("s_waitcnt lgkmcnt(0)"); e("s_barrier")
    Q=10; K=20; L=100; V=140
    for i in range(5): e(f"ds_read_b64 v[{Q+2*i}:{Q+2*i+1}], v4 offset:{8*i}")
    def rowaddr(w):
        if w == 0: return "v4", 0
        if w <= 4: return "v5", 4160-1040*w
        return "v6", 8320-1040*w
    e("v_subrev_u32 v6, 8320, v4")
    for w in range(8):
        a,o = rowaddr(w)
        for i in range(5): e(f"ds_read_b64 v[{K+10*w+2*i}:{K+10*w+2*i+1}], {a} offset:{o+160+8*i}")
    e("s_mov_b32 s20, 0x3e64f92e"); e("s_mov_b32 s23, 0xce6e0000")
    for w in range(8): e(f"v_mov_b32 v{L+w}, 0")
    e("s_waitcnt lgkmcnt(0)")
    for w in range(8):
        a,o = rowaddr(w)
        for i in range(5): e(f"ds_read_b64 v[{V+10*w+2*i}:{V+10*w+2*i+1}], {a} offset:{o+320+8*i}")
    for i in range(10):
        for w in range(8): e(f"v_dot2_f32_bf16 v{L+w}, v{Q+i}, v{K+10*w+i}, v{L+w}")
    e("v_mov_b32 v7, s23")
    e("s_nop 1")
    for w in range(8):
        bf16r(f"v{L+w}", f"v{L+w}"); e(f"v_mul_f32 v{L+w}, s20, v{L+w}"); bf16r(f"v{L+w}", f"v{L+w}")
        if w:
            e(f"v_cmp_le_u32 vcc, {2*w}, v2"); e("s_nop 1")
            e(f"v_cndmask_b32 v{L+w}, v7, v{L+w}, vcc")
    e(f"v_max_f32 v7, v{L}, v{L+1}")
    for w in range(2,8): e(f"v_max_f32 v7, v7, v{L+w}")
    e("s_mov_b32 s23, 0x3fb8aa3b")
    e("v_mov_b32 v8, 0")
    for w in range(8):
        e(f"v_sub_f32 v{L+w}, v{L+w}, v7"); e(f"v_mul_f32 v{L+w}, s23, v{L+w}"); e(f"v_exp_f32 v{L+w}, v{L+w}")
    for w in range(8): e(f"v_add_f32 v8, v8, v{L+w}")
    e("v_rcp_f32 v8, v8"); e("s_nop 0")
    for w in range(8):
        e(f"v_mul_f32 v{L+w}, v{L+w}, v8"); bf16r(f"v{L+w}", f"v{L+w}")
    e("s_waitcnt lgkmcnt(0)")
    O=20
    for d in range(20): e(f"v_mov_b32 v{O+d}, 0")
    for w in range(8):
        for i in range(10):
            e(f"v_lshlrev_b32 v7, 16, v{V+10*w+i}"); e(f"v_fmac_f32 v{O+2*i}, v{L+w}, v7")
            e(f"v_and_b32 v8, 0xffff0000, v{V+10*w+i}"); e(f"v_fmac_f32 v{O+2*i+1}, v{L+w}, v8")
    for i in range(10): e(f"v_cvt_pk_bf16_f32 v{Q+i}, v{O+2*i}, v{O+2*i+1}")
    e("v_lshrrev_b32 v4, 4, v2"); e("v_mul_u32_u24 v4, 69632, v4"); e("v_and_b32 v5, 15, v2"); e("v_lshl_add_u32 v4, v5, 4, v4")
    e("s_mul_i32 s26, s3, 80"); e("s_mul_i32 s27, s24, 20"); e("s_add_u32 s26, s26, s27")
    for p in range(5):
        e("s_lshr_b32 s27, s26, 3"); e("s_lshl_b32 s27, s27, 8"); e("s_bfe_u32 s28, s26, 0x10002"); e("s_lshl_b32 s28, s28, 3"); e("s_add_u32 s27, s27, s28")
        e(f"buffer_store_dwordx2 v[{Q+2*p}:{Q+2*p+1}], v4, s[12:15], s27 offen")
        e("s_add_u32 s26, s26, 4")
    lab("G1_done"); e("s_endpgm")
    kdesc("g1_kernel", 224)

def gen_g2():
    kstart("g2_kernel")
    WB = 20480
    e("s_cmp_ge_u32 s2, 256"); e("s_cbranch_scc1 G2_done")
    e("s_load_dwordx2 s[16:17], s[0:1], 0")
    e("s_load_dwordx2 s[18:19], s[0:1], 72")
    e("s_load_dwordx2 s[40:41], s[0:1], 56")
    e("s_and_b32 s3, s2, 7"); e("s_lshr_b32 s20, s2, 3")
    e("s_lshr_b32 s21, s20, 3"); e("s_lshl_b32 s3, s3, 2"); e("s_add_u32 s21, s21, s3")
    e("s_and_b32 s20, s20, 7")
    e("v_lshrrev_b32 v1, 6, v0"); e("v_and_b32 v2, 63, v0"); e("s_nop 0")
    e("v_readfirstlane_b32 s22, v1")
    e("v_lshlrev_b32 v4, 4, v2")
    e("s_waitcnt lgkmcnt(0)")
    srd(8, 18, 19, AP_SZ, AP_OFF); srd(12, 18, 19, W2_SZ, W2_OFF)
    e("s_mov_b32 s42, s10"); e("s_mov_b32 s43, s14")
    e("s_lshl_b32 s29, s22, 4"); e("s_add_u32 s29, s29, 4"); e("s_cmp_eq_u32 s22, 0"); e("s_cselect_b32 s29, 0, s29"); e("s_cselect_b32 s31, 20, 16")
    e("s_mul_i32 s32, s21, 4*69632"); e("s_lshl_b32 s36, s29, 10"); e("s_add_u32 s32, s32, s36")
    e("s_mul_i32 s33, s20, 68*5120"); e("s_mul_i32 s36, s29, 5120"); e("s_add_u32 s33, s33, s36")
    e("s_add_u32 s44, s32, 69632"); e("s_add_u32 s45, s44, 69632"); e("s_add_u32 s46, s45, 69632")
    e("s_add_u32 s47, s33, 4096")
    srd(24, 16, 17, X_SZ)
    e("v_and_b32 v11, 15, v2"); e("v_lshrrev_b32 v12, 4, v2")
    e("s_lshl_b32 s36, s21, 6"); e("s_lshl_b32 s37, s22, 4"); e("s_add_u32 s36, s36, s37")
    e("v_add_u32 v11, s36, v11"); e("v_mul_u32_u24 v11, 1280, v11")
    e("s_mul_i32 s37, s20, 80"); e("v_lshl_add_u32 v12, v12, 2, s37"); e("v_lshl_add_u32 v11, v12, 1, v11")
    for nb in range(5): e(f"buffer_load_dwordx2 v[{14+2*nb}:{15+2*nb}], v11, s[24:27], 0 offen offset:{32*nb}")
    ACC=32; FR=112; D=4
    for i in range(80): e(f"v_mov_b32 v{ACC+i}, 0")
    e("s_sub_u32 s30, s31, 3"); e("s_mov_b32 s35, -3")
    def ld(fs):
        b = FR+36*fs
        e("s_cmp_lt_i32 s35, s30"); e("s_cselect_b32 s10, s42, 0"); e("s_cselect_b32 s14, s43, 0")
        for q in range(4): e(f"buffer_load_dwordx4 v[{b+4*q}:{b+4*q+3}], v4, s[8:11], s{(32,44,45,46)[q]} offen")
        for q in range(4): e(f"buffer_load_dwordx4 v[{b+16+4*q}:{b+16+4*q+3}], v4, s[12:15], s33 offen offset:{1024*q}")
        e(f"buffer_load_dwordx4 v[{b+32}:{b+35}], v4, s[12:15], s47 offen")
        for s_ in (32,44,45,46): e(f"s_add_u32 s{s_}, s{s_}, 1024")
        e("s_add_u32 s33, s33, 5120"); e("s_add_u32 s47, s47, 5120")
        e("s_add_u32 s35, s35, 1")
    for fs in range(3): ld(fs)
    lab("G2_loop")
    for fs in range(4):
        ld((fs+3)%4)
        e("s_waitcnt vmcnt(27)")
        b = FR+36*fs
        for nb in range(5):
            for mb in range(4):
                a_ = ACC+(nb*4+mb)*4; w = b+16+nb*4; x = b+mb*4
                e(f"v_mfma_f32_16x16x32_bf16 v[{a_}:{a_+3}], v[{w}:{w+3}], v[{x}:{x+3}], v[{a_}:{a_+3}]")
    e("s_cmp_lt_i32 s35, s31"); e("s_cbranch_scc1 G2_loop")
    e("s_waitcnt vmcnt(0)"); e("s_nop 7")
    e("v_mul_u32_u24 v29, 20480, v1"); e("v_add_u32 v10, v29, v4")
    for i in range(20): e(f"ds_write_b128 v10, v[{ACC+4*i}:{ACC+4*i+3}] offset:{i*1024}")
    srd(12, 40, 41, X_SZ)
    e("s_lshl_b32 s37, s22, 10"); e("v_add_u32 v10, s37, v4")
    e("s_waitcnt lgkmcnt(0)"); e("s_barrier")
    e(f"v_add_u32 v13, {2*WB}, v10")
    def rd(nb):
        r = 32+16*nb
        for k in range(4): e(f"ds_read_b128 v[{r+4*k}:{r+4*k+3}], v{(10,13)[k>>1]} offset:{nb*4096+(k&1)*WB}")
    for nb in range(3): rd(nb)
    for nb in range(5):
        r = 32+16*nb
        e(f"s_waitcnt lgkmcnt({min(8,4*(4-nb))})")
        if nb+3 < 5: rd(nb+3)
        e(f"v_lshlrev_b32 v6, 16, v{14+2*nb}"); e(f"v_and_b32 v7, 0xffff0000, v{14+2*nb}")
        e(f"v_lshlrev_b32 v8, 16, v{15+2*nb}"); e(f"v_and_b32 v9, 0xffff0000, v{15+2*nb}")
        for j in range(4):
            e(f"v_add_f32 v{r+4+j}, v{r+4+j}, v{r+8+j}"); e(f"v_add_f32 v{r+4+j}, v{r+4+j}, v{r+12+j}")
            bf16r(f"v{r+4+j}", f"v{r+4+j}"); bf16r(f"v{r+j}", f"v{r+j}")
            e(f"v_add_f32 v{r+j}, v{6+j}, v{r+j}"); bf16r(f"v{r+j}", f"v{r+j}")
            e(f"v_add_f32 v{r+j}, v{r+j}, v{r+4+j}")
        e(f"v_cvt_pk_bf16_f32 v{r}, v{r}, v{r+1}"); e(f"v_cvt_pk_bf16_f32 v{r+1}, v{r+2}, v{r+3}")
        e(f"buffer_store_dwordx2 v[{r}:{r+1}], v11, s[12:15], 0 offen offset:{32*nb}")
    lab("G2_done"); e("s_endpgm")
    kdesc("g2_kernel", 256)

HEAD = open("parallel_sum__sliding_local_dilated__glu_gated_swiglu__prompt.s.ref").read().split("; @launch")[0]
gen_prep(); gen_g1(); gen_g2()
txt = HEAD + """; @launch kernel=prep_kernel grid=(408,1,1) block=(256,1,1) lds=0
; @launch kernel=g1_kernel grid=(256,1,1) block=(512,1,1) lds=163840
; @launch kernel=g2_kernel grid=(256,1,1) block=(256,1,1) lds=81920
.amdgcn_target "amdgcn-amd-amdhsa--gfx950"
.text
""" + "\n".join(OUT) + '\n.section .rodata,"a"\n' + "\n".join(DESCS) + "\n"
open(os.environ.get("GO","k.s"), "w").write(txt)
```

```python
import sys, os
X=os.environ.get("GX","")
OUT = []
def e(s): OUT.append("    " + s)
def lab(s): OUT.append(s + ":")

XP_OFF, WQ_OFF, WF_OFF, W2_OFF, AP_OFF = 0x0, 0x300000, 0x600000, 0xA00000, 0xD00000
XP_SZ, WQ_SZ, WF_SZ, W2_SZ, AP_SZ = 128*20*1024, 8*20*15*1024, 16*20*12*1024, 8*68*5*1024, 128*68*1024
WS_SZ = AP_OFF + AP_SZ
X_SZ = 2048*1280

def srd(d, lo, hi, size, add=0):
    if add:
        e(f"s_add_u32 s{d}, s{lo}, {add:#x}")
        e(f"s_addc_u32 s{d+1}, s{hi}, 0")
    else:
        e(f"s_mov_b32 s{d}, s{lo}")
        e(f"s_mov_b32 s{d+1}, s{hi}")
    e(f"s_and_b32 s{d+1}, s{d+1}, 0xffff")
    e(f"s_mov_b32 s{d+2}, {size:#x}")
    e(f"s_mov_b32 s{d+3}, 0x00020000")

def kstart(name):
    OUT.append(f".globl {name}\n.p2align 8\n.type {name},@function\n{name}:")

DESCS = []
def kdesc(name, vgpr, sgpr=100):
    acc = ((vgpr + 3)//4)*4
    DESCS.append(f""".p2align 6
.amdhsa_kernel {name}
  .amdhsa_next_free_vgpr {vgpr}
  .amdhsa_next_free_sgpr {sgpr}
  .amdhsa_accum_offset {acc}
  .amdhsa_group_segment_fixed_size 0
  .amdhsa_kernarg_size 80
  .amdhsa_user_sgpr_count 2
  .amdhsa_user_sgpr_kernarg_segment_ptr 1
  .amdhsa_system_sgpr_workgroup_id_x 1
.end_amdhsa_kernel""")

def bf16r(dst, src):
    e(f"v_cvt_pk_bf16_f32 {dst}, {src}, {src}")
    e(f"v_lshlrev_b32 {dst}, 16, {dst}")

def divc(q, r, src, d, maxv):
    for sh in range(8, 25):
        m = ((1 << sh) + d - 1)//d
        if m >= (1 << 24) or m*(maxv-1) >= (1 << 32): continue
        if all((i*m) >> sh == i//d for i in range(maxv)): break
    else: raise Exception("no magic")
    e(f"v_mul_u32_u24 {q}, {m}, {src}"); e(f"v_lshrrev_b32 {q}, {sh}, {q}")
    if r:
        e(f"v_mul_u32_u24 {r}, {d}, {q}"); e(f"v_sub_u32 {r}, {src}, {r}")

def gen_prep():
    kstart("prep_kernel")
    e("s_cmp_ge_u32 s2, 408"); e("s_cbranch_scc1 P_done")
    e("s_load_dwordx2 s[6:7], s[0:1], 72")
    e("s_cmp_ge_u32 s2, 128"); e("s_cbranch_scc1 P_pack")
    e("s_load_dwordx2 s[4:5], s[0:1], 0")
    e("v_lshrrev_b32 v1, 4, v0")
    e("v_and_b32 v2, 15, v0")
    e("s_lshl_b32 s3, s2, 4")
    e("v_add_u32 v3, s3, v1")
    e("v_mul_u32_u24 v3, 1280, v3"); e("v_lshl_add_u32 v3, v2, 4, v3")
    e("v_mul_u32_u24 v4, 272, v2"); e("v_lshl_add_u32 v4, v1, 4, v4")
    e("v_lshrrev_b32 v5, 6, v0"); e("v_and_b32 v6, 63, v0")
    e("v_lshrrev_b32 v7, 4, v6"); e("v_mul_u32_u24 v79, 20, v5"); e("v_add_u32 v7, v7, v79"); e("v_mul_u32_u24 v7, 272, v7")
    e("v_lshl_add_u32 v7, v2, 4, v7")
    e("v_lshlrev_b32 v6, 4, v6"); e("v_mul_u32_u24 v5, 5120, v5"); e("v_add_u32 v6, v6, v5")
    e("s_mul_i32 s3, s2, 20480")
    e("s_waitcnt lgkmcnt(0)")
    srd(8, 4, 5, X_SZ)
    srd(12, 6, 7, XP_SZ, XP_OFF)
    for j in range(5): e(f"buffer_load_dwordx4 v[{8+4*j}:{11+4*j}], v3, s[8:11], 0 offen offset:{256*j}")
    e("s_waitcnt vmcnt(0)")
    for i in range(20):
        e(f"v_lshlrev_b32 v{32+2*i}, 16, v{8+i}")
        e(f"v_and_b32 v{33+2*i}, 0xffff0000, v{8+i}")
    def rowsum(v):
        for k in (8,4,2,1):
            e("s_nop 1")
            e(f"v_add_f32_dpp {v}, {v}, {v} row_ror:{k} row_mask:0xf bank_mask:0xf")
    e("v_add_f32 v30, v32, v33"); e("v_add_f32 v31, v34, v35")
    for i in range(4,40,2): e(f"v_add_f32 v30, v30, v{32+i}"); e(f"v_add_f32 v31, v31, v{33+i}")
    e("v_add_f32 v30, v30, v31")
    rowsum("v30")
    e("v_mov_b32 v72, 0x3acccccd")
    e("v_mul_f32 v73, v30, v72")
    e("v_mov_b32 v30, 0"); e("v_mov_b32 v31, 0")
    for i in range(0,40,2):
        e(f"v_sub_f32 v74, v{32+i}, v73"); e(f"v_sub_f32 v75, v{33+i}, v73")
        e("v_fmac_f32 v30, v74, v74"); e("v_fmac_f32 v31, v75, v75")
    e("v_add_f32 v30, v30, v31")
    rowsum("v30")
    e("v_mul_f32 v75, v30, v72")
    bf16r("v73", "v73"); bf16r("v75", "v75")
    e("v_add_f32 v75, 0x3727c5ac, v75")
    bf16r("v75", "v75")
    e("v_sqrt_f32 v75, v75"); e("s_nop 0")
    bf16r("v75", "v75")
    e("v_rcp_f32 v76, v75"); e("s_nop 0")
    for i in range(40):
        e(f"v_sub_f32 v{32+i}, v{32+i}, v73")
        bf16r(f"v{32+i}", f"v{32+i}")
        e(f"v_mul_f32 v77, v{32+i}, v76")
        e(f"v_fma_f32 v78, -v77, v75, v{32+i}")
        e(f"v_fma_f32 v{32+i}, v78, v76, v77")
    for i in range(20): e(f"v_cvt_pk_bf16_f32 v{8+i}, v{32+2*i}, v{33+2*i}")
    for j in range(5): e(f"ds_write_b128 v4, v[{8+4*j}:{11+4*j}] offset:{j*16*272}")
    e("s_waitcnt lgkmcnt(0)"); e("s_barrier")
    for j in range(5): e(f"ds_read_b128 v[{8+4*j}:{11+4*j}], v7 offset:{j*4*272}")
    for j in range(5):
        e(f"s_waitcnt lgkmcnt({4-j})")
        e(f"buffer_store_dwordx4 v[{8+4*j}:{11+4*j}], v6, s[12:15], s3 offen offset:{1024*j if j<4 else 0}"+" sc1")
        if j == 3: e("s_add_u32 s3, s3, 4096")
    e("s_endpgm")
    lab("P_pack")
    e("s_sub_u32 s3, s2, 128")
    e("s_mov_b32 s40, 0x05040100"); e("s_mov_b32 s41, 0x07060302")
    e("s_cmp_ge_u32 s3, 195"); e("s_cbranch_scc1 P_w2o")
    e("s_cmp_ge_u32 s3, 75"); e("s_cbranch_scc1 P_w13")
    e("s_load_dwordx2 s[4:5], s[0:1], 8")
    e("s_lshl_b32 s3, s3, 2"); e("v_lshrrev_b32 v1, 6, v0"); e("v_add_u32 v1, s3, v1")
    divc("v2", "v3", "v1", 15, 300)
    e("v_bfe_u32 v8, v0, 4, 2"); e("v_lshl_add_u32 v2, v2, 2, v8"); e("v_and_b32 v8, 15, v0"); e("v_lshl_add_u32 v3, v3, 4, v8")
    divc("v4", "v5", "v3", 80, 240)
    divc("v6", "v7", "v5", 10, 80)
    e("v_mul_u32_u24 v4, 5, v4"); e("v_lshrrev_b32 v8, 1, v7"); e("v_add_u32 v4, v4, v8")
    e("v_lshrrev_b32 v8, 2, v2"); e("v_mul_u32_u24 v6, 20, v6"); e("v_add_u32 v6, v6, v8")
    e("v_mul_u32_u24 v6, 15, v6"); e("v_add_u32 v6, v6, v4")
    e(f"s_mov_b32 s20, {WQ_OFF}"); e("s_mov_b32 s21, 3840"); e(f"s_mov_b32 s22, {640*3840}")
    e("v_mul_u32_u24 v10, 8*3840, v2"); e("v_lshl_add_u32 v10, v3, 4, v10"); e("v_add_u32 v11, 4*3840, v10")
    e("s_branch P_go")
    lab("P_w13")
    e("s_sub_u32 s3, s3, 75"); e("s_cmp_ge_u32 s3, 60"); e("s_cselect_b32 s23, 3, 0"); e("s_cselect_b32 s24, 40, 32"); e("s_cselect_b32 s25, 60, 0")
    e("s_sub_u32 s3, s3, s25")
    e("s_load_dwordx2 s[4:5], s[0:1], s24")
    e("s_lshl_b32 s3, s3, 2"); e("v_lshrrev_b32 v1, 6, v0"); e("v_add_u32 v1, s3, v1")
    divc("v2", "v3", "v1", 12, 240)
    e("v_bfe_u32 v8, v0, 4, 2"); e("v_lshl_add_u32 v2, v2, 2, v8"); e("v_and_b32 v8, 15, v0"); e("v_lshl_add_u32 v3, v3, 4, v8")
    divc("v6", "v5", "v3", 12, 192)
    divc("v4", "v7", "v5", 6, 12)
    e("v_mul_u32_u24 v4, 6, v4"); e("v_lshrrev_b32 v8, 1, v7"); e("v_add_u32 v4, v4, v8"); e("v_add_u32 v4, s23, v4")
    e("v_lshrrev_b32 v8, 2, v2"); e("v_mul_u32_u24 v6, 20, v6"); e("v_add_u32 v6, v6, v8")
    e("v_mul_u32_u24 v6, 12, v6"); e("v_add_u32 v6, v6, v4")
    e(f"s_mov_b32 s20, {WF_OFF}"); e("s_mov_b32 s21, 3072"); e(f"s_mov_b32 s22, {640*3072}")
    e("v_mul_u32_u24 v10, 8*3072, v2"); e("v_lshl_add_u32 v10, v3, 4, v10"); e("v_add_u32 v11, 4*3072, v10")
    e("s_branch P_go")
    lab("P_w2o")
    e("s_sub_u32 s3, s3, 195"); e("s_cmp_ge_u32 s3, 25"); e("s_cselect_b32 s24, 48, 16"); e("s_cselect_b32 s25, 25, 0"); e("s_cselect_b32 s26, 1, 0")
    e("s_sub_u32 s3, s3, s25")
    e("s_load_dwordx2 s[4:5], s[0:1], s24")
    e("s_lshl_b32 s3, s3, 2"); e("v_lshrrev_b32 v1, 6, v0"); e("v_add_u32 v1, s3, v1")
    divc("v2", "v3", "v1", 5, 240)
    e("v_bfe_u32 v8, v0, 4, 2"); e("v_lshl_add_u32 v2, v2, 2, v8"); e("v_and_b32 v8, 15, v0"); e("v_lshl_add_u32 v3, v3, 4, v8")
    divc("v6", "v7", "v3", 10, 80)
    e("v_lshrrev_b32 v4, 1, v7")
    e("v_lshrrev_b32 v8, 2, v2")
    e("s_mul_i32 s27, s26, 20")
    e("v_mul_u32_u24 v6, 68, v6"); e("v_add_u32 v6, v6, v8"); e("v_add_u32 v6, s27, v6")
    e("v_mul_u32_u24 v6, 5, v6"); e("v_add_u32 v6, v6, v4")
    e(f"s_mov_b32 s20, {W2_OFF}"); e("s_mov_b32 s21, 1280"); e(f"s_mov_b32 s22, {640*1280}")
    e("s_cmp_eq_u32 s26, 0"); e("s_cbranch_scc1 P_wo")
    e(f"s_mov_b32 s22, {1536*1280}")
    divc("v12", "v13", "v8", 3, 48)
    e("v_and_b32 v14, 3, v2")
    e("v_mul_u32_u24 v12, 96, v12"); e("v_lshl_add_u32 v12, v14, 2, v12")
    e("v_cmp_eq_u32 vcc, 1, v13"); e("v_mov_b32 v15, 48"); e("v_cndmask_b32 v14, 0, v15, vcc")
    e("v_cmp_eq_u32 vcc, 2, v13"); e("v_mov_b32 v16, 32"); e("v_cndmask_b32 v14, v14, v16, vcc")
    e("v_mov_b32 v16, 16"); e("v_cndmask_b32 v15, v16, v15, vcc")
    e("v_add_u32 v12, v12, v14")
    e("v_add_u32 v13, v12, v15")
    e("v_mul_u32_u24 v10, 1280, v12"); e("v_lshl_add_u32 v10, v3, 4, v10")
    e("v_mul_u32_u24 v11, 1280, v13"); e("v_lshl_add_u32 v11, v3, 4, v11")
    e("s_branch P_go")
    lab("P_wo")
    e("v_mul_u32_u24 v10, 8*1280, v2"); e("v_lshl_add_u32 v10, v3, 4, v10"); e("v_add_u32 v11, 4*1280, v10")
    lab("P_go")
    e("v_lshlrev_b32 v6, 10, v6"); e("v_and_b32 v8, 3, v2"); e("v_lshl_add_u32 v6, v8, 8, v6")
    e("v_and_b32 v8, 1, v7"); e("v_lshl_add_u32 v6, v8, 7, v6"); e("v_add_u32 v6, s20, v6")
    e("s_lshl_b32 s24, s21, 1"); e("s_add_u32 s25, s24, s21")
    e("s_waitcnt lgkmcnt(0)")
    e("s_mov_b32 s8, s4"); e("s_and_b32 s9, s5, 0xffff"); e("s_mov_b32 s10, s22"); e("s_mov_b32 s11, 0x00020000")
    srd(12, 6, 7, WS_SZ)
    for i in range(8):
        so = ("0","s21","s24","s25")[i&3]
        e(f"buffer_load_dwordx4 v[{16+4*i}:{19+4*i}], v{10+(i>>2)}, s[8:11], {so} offen")
    e("s_waitcnt vmcnt(0)")
    for c_ in range(8):
        for q in range(4):
            e(f"v_perm_b32 v{48+4*c_+q}, v{16+4*(2*q+1)+(c_>>1)}, v{16+4*(2*q)+(c_>>1)}, s{40+(c_&1)}")
    e("v_lshrrev_b32 v1, 6, v0"); e("v_mul_u32_u24 v1, 9216, v1")
    e("v_bfe_u32 v2, v0, 1, 3"); e("v_bfe_u32 v3, v0, 4, 2"); e("v_and_b32 v4, 1, v0")
    e("v_lshlrev_b32 v2, 3, v2"); e("v_lshl_add_u32 v2, v3, 1, v2"); e("v_add_u32 v2, v2, v4")
    e("v_mul_u32_u24 v2, 144, v2"); e("v_add_u32 v2, v2, v1")
    for c_ in range(8): e(f"ds_write_b128 v2, v[{48+4*c_}:{51+4*c_}] offset:{16*c_}")
    e("v_bfe_u32 v3, v0, 3, 3"); e("v_mul_u32_u24 v3, 144, v3"); e("v_and_b32 v4, 7, v0"); e("v_lshl_add_u32 v3, v4, 4, v3"); e("v_add_u32 v3, v3, v1")
    e("v_and_b32 v4, 63, v0"); e("v_lshlrev_b32 v4, 4, v4")
    for i in range(8): e(f"v_readlane_b32 s{48+i}, v6, {2*i}")
    e("s_waitcnt lgkmcnt(0)")
    for i in range(8): e(f"ds_read_b128 v[{16+4*i}:{19+4*i}], v3 offset:{1152*i}")
    for i in range(8):
        e(f"s_waitcnt lgkmcnt({7-i})")
        e(f"buffer_store_dwordx4 v[{16+4*i}:{19+4*i}], v4, s[12:15], s{48+i} offen"+" sc1")
    lab("P_done"); e("s_endpgm")
    kdesc("prep_kernel", 80)

STG = 28672; NB = 5; NT = 20
def gen_g1():
    kstart("g1_kernel")
    e("s_cmp_ge_u32 s2, 256"); e("s_cbranch_scc1 G1_done")
    if 'clk' in X: e("s_memtime s[60:61]"); e("s_load_dwordx2 s[64:65], s[0:1], 64")
    e("s_load_dwordx2 s[18:19], s[0:1], 72")
    e("s_and_b32 s3, s2, 7"); e("s_lshr_b32 s20, s2, 3")
    e("v_lshrrev_b32 v1, 6, v0"); e("v_and_b32 v2, 63, v0"); e("s_nop 0")
    e("v_readfirstlane_b32 s22, v1")
    e("v_lshlrev_b32 v4, 4, v2")
    e("s_waitcnt lgkmcnt(0)")
    srd(8, 18, 19, XP_SZ, XP_OFF)
    e("s_mov_b32 s38, s10")
    e("s_mov_b32 s35, -4"); e("s_mov_b32 s36, 0"); e("s_mov_b32 s37, 0")
    e("s_cmp_ge_u32 s20, 16"); e("s_cbranch_scc1 G1_qkv")
    cnt=[0]
    srd(12, 18, 19, WF_SZ, WF_OFF)
    e("s_mov_b32 s39, s14")
    e("s_lshl_b32 s24, s3, 1"); e("s_and_b32 s25, s20, 1"); e("s_add_u32 s24, s24, s25")
    e("s_lshr_b32 s21, s20, 1")
    e("s_lshl_b32 s25, s21, 4"); e("s_add_u32 s25, s25, s22"); e("s_mul_i32 s32, s25, 20480")
    e("s_mul_i32 s33, s24, 245760"); e("s_lshl_b32 s25, s22, 10"); e("s_add_u32 s33, s33, s25")
    e("s_lshl_b32 s30, s22, 10")
    def dmaF():
        cnt[0]+=1
        e("s_cmp_lt_i32 s35, 16"); e("s_cselect_b32 s10, s38, 0"); e("s_cselect_b32 s14, s39, 0")
        e("s_add_u32 s40, s30, s36")
        e("s_mov_b32 m0, s40"); e("s_add_u32 s40, s40, 8192"); e(f"s_add_u32 s41, s32, {8*20480}")
        e("buffer_load_dwordx4 v4, s[8:11], s32 offen lds")
        e("s_mov_b32 m0, s40"); e("s_add_u32 s40, s40, 8192")
        e("buffer_load_dwordx4 v4, s[8:11], s41 offen lds")
        e("s_mov_b32 m0, s40"); e("s_add_u32 s40, s40, 8192"); e("s_add_u32 s41, s33, 8192")
        e("buffer_load_dwordx4 v4, s[12:15], s33 offen lds")
        e("s_cmp_ge_u32 s22, 4"); e(f"s_cbranch_scc1 G1_sk{cnt[0]}")
        e("s_mov_b32 m0, s40"); e("s_nop 0")
        e("buffer_load_dwordx4 v4, s[12:15], s41 offen lds")
        lab(f"G1_sk{cnt[0]}")
        e("s_add_u32 s32, s32, 1024"); e("s_add_u32 s33, s33, 12288")
        e(f"s_add_u32 s36, s36, {STG}"); e(f"s_cmp_eq_u32 s36, {NB*STG}"); e("s_cselect_b32 s36, 0, s36")
    def waitF(k):
        cnt[0]+=1
        e("s_cmp_ge_u32 s22, 4"); e(f"s_cbranch_scc1 G1_wa{cnt[0]}")
        e(f"s_waitcnt vmcnt({4*k})"); e(f"s_branch G1_wb{cnt[0]}")
        lab(f"G1_wa{cnt[0]}"); e(f"s_waitcnt vmcnt({3*k})"); lab(f"G1_wb{cnt[0]}")
    e("v_and_b32 v10, 3, v1"); e("v_lshl_add_u32 v18, v10, 12, v4")
    e("v_lshrrev_b32 v10, 2, v1"); e("v_mul_u32_u24 v10, 6144, v10"); e("v_add_u32 v19, v10, v4"); e("v_add_u32 v19, 16384, v19")
    def addrs():
        e("v_add_u32 v22, s37, v18"); e("v_add_u32 v23, s37, v19"); e("v_add_u32 v24, s37, v4")
        e(f"s_add_u32 s37, s37, {STG}"); e(f"s_cmp_eq_u32 s37, {NB*STG}"); e("s_cselect_b32 s37, 0, s37")
    ACC = 32
    def mainloop(tag, dma, wait, Ard, Wrd, pairs, FR):
        na, nw = len(Ard), len(Wrd); fsz = 4*(na+nw)
        def reads(fs):
            L=[]
            b = FR + fsz*fs
            for i,(v,o) in enumerate(Ard): L.append(f"ds_read_b128 v[{b+4*i}:{b+4*i+3}], {v} offset:{o}")
            for i,(v,o) in enumerate(Wrd): L.append(f"ds_read_b128 v[{b+4*na+4*i}:{b+4*na+4*i+3}], {v} offset:{o}")
            return L
        for i in range(4*len(pairs)): e(f"v_mov_b32 v{ACC+i}, 0")
        lab(f"{tag}_pro")
        dma()
        e("s_add_u32 s35, s35, 1"); e("s_cmp_lt_i32 s35, 0"); e(f"s_cbranch_scc1 {tag}_pro")
        wait(3); addrs(); e("s_barrier")
        for r in reads(0): e(r)
        if 'clk' in X: e("s_memtime s[80:81]")
        lab(f"{tag}_loop")
        for fs in range(2):
            wait(2); addrs(); e("s_barrier")
            dma()
            e("s_waitcnt lgkmcnt(0)")
            R = reads(1-fs); k = 0
            b = FR + fsz*fs
            for p,(ai,wi) in enumerate(pairs):
                a_ = ACC+4*p; w = b+4*na+4*wi; x = b+4*ai
                if 'm32' in X:
                    if p % 2 == 0:
                        a_ = ACC+16*((p//2)%6)
                        e(f"v_mfma_f32_32x32x16_bf16 v[{a_}:{a_+15}], v[{w}:{w+3}], v[{x}:{x+3}], v[{a_}:{a_+15}]")
                elif 'nomf' not in X: e(f"v_mfma_f32_16x16x32_bf16 v[{a_}:{a_+3}], v[{w}:{w+3}], v[{x}:{x+3}], v[{a_}:{a_+3}]")
                if 'nord' in X: k = len(R)
                if k < len(R) and (p % 4 != 3 or len(pairs)-p <= len(R)-k): e(R[k]); k += 1
            while k < len(R): e(R[k]); k += 1
            e("s_add_u32 s35, s35, 1")
        e(f"s_cmp_lt_i32 s35, {NT}"); e(f"s_cbranch_scc1 {tag}_loop")
        e("s_waitcnt lgkmcnt(0)")
        if 'clk' in X: e("s_memtime s[82:83]")
        e("s_waitcnt vmcnt(0)")
    def clkfin():
        if 'clk' not in X: return
        e("s_waitcnt vmcnt(0)")
        e("s_memtime s[66:67]"); e("s_waitcnt lgkmcnt(0)")
        e("s_sub_u32 s66, s66, s60"); e("s_sub_u32 s80, s80, s60"); e("s_sub_u32 s82, s82, s60"); e("s_sub_u32 s84, s84, s60")
        srd(72, 64, 65, 256)
        e("v_mov_b32 v60, s80"); e("v_mov_b32 v61, s82"); e("v_mov_b32 v62, s84"); e("v_mov_b32 v63, s66"); e("v_mov_b32 v64, 0")
        cnt[0]+=1
        e("s_cmp_gt_u32 s22, 3"); e("s_cbranch_scc1 G1_done")
        e("s_and_b32 s70, s2, 0x7f"); e("s_cmp_lg_u32 s70, 0"); e("s_cbranch_scc1 G1_done")
        e("s_lshr_b32 s70, s2, 7"); e("s_lshl_b32 s70, s70, 6"); e("s_lshl_b32 s71, s22, 4"); e("s_add_u32 s70, s70, s71")
        e("buffer_store_dwordx4 v[60:63], v64, s[72:75], s70 offen")
    pairsF = [(mb, nb) for nb in range(6) for mb in range(4)]
    mainloop("G1F", dmaF, waitF, [("v22", 1024*i) for i in range(4)], [("v23", 1024*i) for i in range(6)], pairsF, 128)
    srd(8, 18, 19, AP_SZ, AP_OFF)
    e("s_lshl_b32 s25, s21, 4"); e("s_and_b32 s26, s22, 3"); e("s_lshl_b32 s26, s26, 2"); e("s_add_u32 s25, s25, s26")
    e("s_mul_i32 s25, s25, 69632")
    e("s_mul_i32 s26, s24, 3072"); e("s_add_u32 s25, s25, s26"); e("s_add_u32 s25, s25, 20480")
    e("s_lshr_b32 s26, s22, 2")
    e("s_lshl_b32 s27, s26, 10"); e("s_add_u32 s27, s27, s25")
    e("s_lshl_b32 s28, s26, 3"); e("s_add_u32 s28, s28, s25"); e("s_add_u32 s28, s28, 2048")
    e("s_mov_b32 s36, 0xbfb8aa3b")
    e("s_nop 4")
    T = 128
    for mb in range(4):
        idx = []
        for b in range(3):
            for j in range(4): idx.append((ACC+(b*4+mb)*4+j, ACC+((b+3)*4+mb)*4+j))
        for k,(g,u) in enumerate(idx): bf16r(f"v{g}", f"v{g}")
        for k,(g,u) in enumerate(idx): e(f"v_mul_f32 v{T+k}, s36, v{g}")
        for k in range(12): e(f"v_exp_f32 v{T+k}, v{T+k}")
        for k,(g,u) in enumerate(idx): bf16r(f"v{u}", f"v{u}")
        for k in range(12): e(f"v_add_f32 v{T+k}, 1.0, v{T+k}")
        for k in range(12): e(f"v_rcp_f32 v{T+k}, v{T+k}")
        e("s_nop 0")
        for k,(g,u) in enumerate(idx): e(f"v_mul_f32 v{T+k}, v{g}, v{T+k}")
        for k in range(12): bf16r(f"v{T+k}", f"v{T+k}")
        for k,(g,u) in enumerate(idx): e(f"v_mul_f32 v{T+k}, v{T+k}, v{u}")
        O = 144+8*mb
        for k in range(6): e(f"v_cvt_pk_bf16_f32 v{O+k}, v{T+2*k}, v{T+2*k+1}")
        e(f"buffer_store_dwordx4 v[{O}:{O+3}], v4, s[8:11], s27 offen"+" sc1")
        e(f"buffer_store_dwordx2 v[{O+4}:{O+5}], v4, s[8:11], s28 offen"+" sc1")
        if mb < 3: e("s_add_u32 s27, s27, 69632"); e("s_add_u32 s28, s28, 69632")
    clkfin()
    e("s_endpgm")
    lab("G1_qkv")
    srd(12, 18, 19, WQ_SZ, WQ_OFF)
    e("s_mov_b32 s39, s14")
    e("s_sub_u32 s21, s20, 16")
    e("s_lshl_b32 s25, s21, 3"); e("s_add_u32 s25, s25, s22"); e("s_sub_u32 s25, s25, 1"); e("s_max_i32 s25, s25, 0")
    e("s_mul_i32 s32, s25, 20480")
    e("s_mul_i32 s33, s3, 307200"); e("s_lshl_b32 s25, s22, 10"); e("s_add_u32 s33, s33, s25")
    e("s_lshl_b32 s25, s21, 3"); e("s_add_u32 s25, s25, 7"); e("s_mul_i32 s25, s25, 20480")
    e("s_add_u32 s26, s33, 7168")
    e("s_mov_b32 s42, 15360"); e("s_cmp_eq_u32 s22, 0"); e("s_cselect_b32 s34, s25, s26"); e("s_cselect_b32 s42, 1024, s42")
    e("s_cselect_b32 s44, s8, s12"); e("s_cselect_b32 s45, s9, s13"); e("s_cselect_b32 s43, s38, s39"); e("s_mov_b32 s47, 0x00020000")
    e("s_lshl_b32 s30, s22, 10")
    e("s_add_u32 s31, s30, 9216")
    e("s_add_u32 s25, s31, 7168"); e("s_cmp_eq_u32 s22, 0"); e("s_cselect_b32 s29, 8192, s25")
    def dmaQ():
        e("s_cmp_lt_i32 s35, 16"); e("s_cselect_b32 s10, s38, 0"); e("s_cselect_b32 s14, s39, 0"); e("s_cselect_b32 s46, s43, 0")
        e("s_add_u32 s40, s30, s36"); e("s_mov_b32 m0, s40"); e("s_add_u32 s40, s31, s36")
        e("buffer_load_dwordx4 v4, s[8:11], s32 offen lds")
        e("s_mov_b32 m0, s40"); e("s_add_u32 s40, s29, s36")
        e("buffer_load_dwordx4 v4, s[12:15], s33 offen lds")
        e("s_mov_b32 m0, s40"); e("s_nop 0")
        e("buffer_load_dwordx4 v4, s[44:47], s34 offen lds")
        e("s_add_u32 s32, s32, 1024"); e("s_add_u32 s33, s33, 15360"); e("s_add_u32 s34, s34, s42")
        e(f"s_add_u32 s36, s36, {STG}"); e(f"s_cmp_eq_u32 s36, {NB*STG}"); e("s_cselect_b32 s36, 0, s36")
    def waitQ(k): e(f"s_waitcnt vmcnt({3*k})")
    e("v_lshrrev_b32 v10, 1, v1"); e("v_lshlrev_b32 v10, 11, v10"); e("v_add_u32 v18, v10, v4"); e("v_add_u32 v18, 1024, v18")
    e("v_and_b32 v10, 1, v1"); e("v_lshlrev_b32 v10, 13, v10"); e("v_add_u32 v19, v10, v4"); e("v_add_u32 v19, 9216, v19")
    e("s_cmp_eq_u32 s22, 1"); e("s_cbranch_scc1 G1_v2")
    e("s_cmp_eq_u32 s22, 2"); e("s_cbranch_scc1 G1_v3")
    e("s_and_b32 s25, s22, 1"); e("s_cmp_eq_u32 s25, 1"); e("s_cbranch_scc1 G1_v1")
    def qepi(nw, halo):
        e("s_barrier")
        e("v_and_b32 v10, 15, v2"); e("v_mul_u32_u24 v10, 520, v10"); e("v_lshrrev_b32 v11, 4, v2"); e("v_lshl_add_u32 v12, v11, 3, v10")
        e("v_and_b32 v11, 1, v1"); e("v_lshl_add_u32 v12, v11, 8, v12")
        e("v_lshrrev_b32 v11, 1, v1"); e("v_mul_u32_u24 v11, 16640, v11"); e("v_add_u32 v10, v12, v11"); e("v_add_u32 v10, 8320, v10")
        p = 0
        for wi in range(nw):
            for mb in range(2):
                g = ACC+4*p; p += 1
                e(f"v_cvt_pk_bf16_f32 v{g}, v{g}, v{g+1}"); e(f"v_cvt_pk_bf16_f32 v{g+1}, v{g+2}, v{g+3}")
                e(f"ds_write_b64 v10, v[{g}:{g+1}] offset:{mb*8320+wi*32}")
        for wi in halo:
            g = ACC+4*p; p += 1
            e(f"v_cvt_pk_bf16_f32 v{g}, v{g}, v{g+1}"); e(f"v_cvt_pk_bf16_f32 v{g+1}, v{g+2}, v{g+3}")
            e(f"ds_write_b64 v12, v[{g}:{g+1}] offset:{wi*32}")
        e("s_branch G1_att")
    A2 = [("v22", 0), ("v22", 1024)]
    def W(n): return [("v23", 1024*i) for i in range(n)]
    mainloop("G1Q0", dmaQ, waitQ, A2, W(8), [(mb,wi) for wi in range(8) for mb in range(2)], 128); qepi(8, [])
    lab("G1_v1")
    mainloop("G1Q1", dmaQ, waitQ, A2, W(7), [(mb,wi) for wi in range(7) for mb in range(2)], 128); qepi(7, [])
    lab("G1_v2")
    mainloop("G1Q2", dmaQ, waitQ, A2+[("v24",0)], W(7), [(mb,wi) for wi in range(7) for mb in range(2)]+[(2,wi) for wi in range(7)], 128); qepi(7, list(range(7)))
    lab("G1_v3")
    mainloop("G1Q3", dmaQ, waitQ, A2+[("v24",0)], W(8), [(mb,wi) for wi in range(8) for mb in range(2)]+[(2,wi) for wi in (5,6,7)], 128); qepi(8, [5,6,7])
    lab("G1_att")
    srd(12, 18, 19, AP_SZ, AP_OFF)
    e("s_and_b32 s24, s22, 3"); e("s_lshr_b32 s25, s22, 2")
    e("s_lshl_b32 s26, s25, 6"); e("v_add_u32 v3, s26, v2")
    e("s_lshl_b32 s27, s21, 7"); e("v_add_u32 v2, s27, v3")
    e("s_mul_i32 s26, s24, 40"); e("s_add_u32 s26, s26, 16*520")
    e("v_mul_u32_u24 v4, 520, v3"); e("v_add_u32 v4, s26, v4")
    e("v_subrev_u32 v5, 4160, v4")
    e("s_waitcnt lgkmcnt(0)"); e("s_barrier")
    if 'clk' in X: e("s_memtime s[84:85]")
    Q=10; K=20; L=100; V=140
    for i in range(5): e(f"ds_read_b64 v[{Q+2*i}:{Q+2*i+1}], v4 offset:{8*i}")
    def rowaddr(w):
        if w == 0: return "v4", 0
        if w <= 4: return "v5", 4160-1040*w
        return "v6", 8320-1040*w
    e("v_subrev_u32 v6, 8320, v4")
    for w in range(8):
        a,o = rowaddr(w)
        for i in range(5): e(f"ds_read_b64 v[{K+10*w+2*i}:{K+10*w+2*i+1}], {a} offset:{o+160+8*i}")
    e("s_mov_b32 s20, 0x3e64f92e"); e("s_mov_b32 s23, 0xce6e0000")
    for w in range(8): e(f"v_mov_b32 v{L+w}, 0")
    e("s_waitcnt lgkmcnt(0)")
    for w in range(8):
        a,o = rowaddr(w)
        for i in range(5): e(f"ds_read_b64 v[{V+10*w+2*i}:{V+10*w+2*i+1}], {a} offset:{o+320+8*i}")
    for i in range(10):
        for w in range(8): e(f"v_dot2_f32_bf16 v{L+w}, v{Q+i}, v{K+10*w+i}, v{L+w}")
    e("v_mov_b32 v7, s23")
    e("s_nop 1")
    for w in range(8):
        bf16r(f"v{L+w}", f"v{L+w}"); e(f"v_mul_f32 v{L+w}, s20, v{L+w}"); bf16r(f"v{L+w}", f"v{L+w}")
        if w:
            e(f"v_cmp_le_u32 vcc, {2*w}, v2"); e("s_nop 1")
            e(f"v_cndmask_b32 v{L+w}, v7, v{L+w}, vcc")
    e(f"v_max_f32 v7, v{L}, v{L+1}")
    for w in range(2,8): e(f"v_max_f32 v7, v7, v{L+w}")
    e("s_mov_b32 s23, 0x3fb8aa3b")
    e("v_mov_b32 v8, 0")
    for w in range(8):
        e(f"v_sub_f32 v{L+w}, v{L+w}, v7"); e(f"v_mul_f32 v{L+w}, s23, v{L+w}"); e(f"v_exp_f32 v{L+w}, v{L+w}")
    for w in range(8): e(f"v_add_f32 v8, v8, v{L+w}")
    e("v_rcp_f32 v8, v8"); e("s_nop 0")
    for w in range(8):
        e(f"v_mul_f32 v{L+w}, v{L+w}, v8"); bf16r(f"v{L+w}", f"v{L+w}")
    e("s_waitcnt lgkmcnt(0)")
    O=20
    for d in range(20): e(f"v_mov_b32 v{O+d}, 0")
    for w in range(8):
        for i in range(10):
            e(f"v_lshlrev_b32 v7, 16, v{V+10*w+i}"); e(f"v_fmac_f32 v{O+2*i}, v{L+w}, v7")
            e(f"v_and_b32 v8, 0xffff0000, v{V+10*w+i}"); e(f"v_fmac_f32 v{O+2*i+1}, v{L+w}, v8")
    for i in range(10): e(f"v_cvt_pk_bf16_f32 v{Q+i}, v{O+2*i}, v{O+2*i+1}")
    e("v_lshrrev_b32 v4, 4, v2"); e("v_mul_u32_u24 v4, 69632, v4"); e("v_and_b32 v5, 15, v2"); e("v_lshl_add_u32 v4, v5, 4, v4")
    e("s_mul_i32 s26, s3, 80"); e("s_mul_i32 s27, s24, 20"); e("s_add_u32 s26, s26, s27")
    for p in range(5):
        e("s_lshr_b32 s27, s26, 3"); e("s_lshl_b32 s27, s27, 8"); e("s_bfe_u32 s28, s26, 0x10002"); e("s_lshl_b32 s28, s28, 3"); e("s_add_u32 s27, s27, s28")
        e(f"buffer_store_dwordx2 v[{Q+2*p}:{Q+2*p+1}], v4, s[12:15], s27 offen"+" sc1")
        e("s_add_u32 s26, s26, 4")
    clkfin()
    lab("G1_done"); e("s_endpgm")
    kdesc("g1_kernel", 224)

def gen_g2():
    kstart("g2_kernel")
    WB = 20480
    e("s_cmp_ge_u32 s2, 256"); e("s_cbranch_scc1 G2_done")
    e("s_load_dwordx2 s[16:17], s[0:1], 0")
    e("s_load_dwordx2 s[18:19], s[0:1], 72")
    e("s_load_dwordx2 s[40:41], s[0:1], 56")
    e("s_and_b32 s3, s2, 7"); e("s_lshr_b32 s20, s2, 3")
    e("s_lshr_b32 s21, s20, 3"); e("s_lshl_b32 s3, s3, 2"); e("s_add_u32 s21, s21, s3")
    e("s_and_b32 s20, s20, 7")
    e("v_lshrrev_b32 v1, 6, v0"); e("v_and_b32 v2, 63, v0"); e("s_nop 0")
    e("v_readfirstlane_b32 s22, v1")
    e("v_lshlrev_b32 v4, 4, v2")
    e("s_waitcnt lgkmcnt(0)")
    srd(8, 18, 19, AP_SZ, AP_OFF); srd(12, 18, 19, W2_SZ, W2_OFF)
    e("s_mov_b32 s42, s10"); e("s_mov_b32 s43, s14")
    e("s_lshl_b32 s29, s22, 4"); e("s_add_u32 s29, s29, 4"); e("s_cmp_eq_u32 s22, 0"); e("s_cselect_b32 s29, 0, s29"); e("s_cselect_b32 s31, 20, 16")
    e("s_mul_i32 s32, s21, 4*69632"); e("s_lshl_b32 s36, s29, 10"); e("s_add_u32 s32, s32, s36")
    e("s_mul_i32 s33, s20, 68*5120"); e("s_mul_i32 s36, s29, 5120"); e("s_add_u32 s33, s33, s36")
    e("s_add_u32 s44, s32, 69632"); e("s_add_u32 s45, s44, 69632"); e("s_add_u32 s46, s45, 69632")
    e("s_add_u32 s47, s33, 4096")
    srd(24, 16, 17, X_SZ)
    e("v_and_b32 v11, 15, v2"); e("v_lshrrev_b32 v12, 4, v2")
    e("s_lshl_b32 s36, s21, 6"); e("s_lshl_b32 s37, s22, 4"); e("s_add_u32 s36, s36, s37")
    e("v_add_u32 v11, s36, v11"); e("v_mul_u32_u24 v11, 1280, v11")
    e("s_mul_i32 s37, s20, 80"); e("v_lshl_add_u32 v12, v12, 2, s37"); e("v_lshl_add_u32 v11, v12, 1, v11")
    for nb in range(5): e(f"buffer_load_dwordx2 v[{14+2*nb}:{15+2*nb}], v11, s[24:27], 0 offen offset:{32*nb}")
    ACC=32; FR=112; D=4
    for i in range(80): e(f"v_mov_b32 v{ACC+i}, 0")
    e("s_sub_u32 s30, s31, 3"); e("s_mov_b32 s35, -3")
    def ld(fs):
        b = FR+36*fs
        e("s_cmp_lt_i32 s35, s30"); e("s_cselect_b32 s10, s42, 0"); e("s_cselect_b32 s14, s43, 0")
        for q in range(4): e(f"buffer_load_dwordx4 v[{b+4*q}:{b+4*q+3}], v4, s[8:11], s{(32,44,45,46)[q]} offen")
        for q in range(4): e(f"buffer_load_dwordx4 v[{b+16+4*q}:{b+16+4*q+3}], v4, s[12:15], s33 offen offset:{1024*q}")
        e(f"buffer_load_dwordx4 v[{b+32}:{b+35}], v4, s[12:15], s47 offen")
        for s_ in (32,44,45,46): e(f"s_add_u32 s{s_}, s{s_}, 1024")
        e("s_add_u32 s33, s33, 5120"); e("s_add_u32 s47, s47, 5120")
        e("s_add_u32 s35, s35, 1")
    for fs in range(3): ld(fs)
    lab("G2_loop")
    for fs in range(4):
        ld((fs+3)%4)
        e("s_waitcnt vmcnt(27)")
        b = FR+36*fs
        for nb in range(5):
            for mb in range(4):
                a_ = ACC+(nb*4+mb)*4; w = b+16+nb*4; x = b+mb*4
                e(f"v_mfma_f32_16x16x32_bf16 v[{a_}:{a_+3}], v[{w}:{w+3}], v[{x}:{x+3}], v[{a_}:{a_+3}]")
    e("s_cmp_lt_i32 s35, s31"); e("s_cbranch_scc1 G2_loop")
    e("s_waitcnt vmcnt(0)"); e("s_nop 7")
    e("v_mul_u32_u24 v29, 20480, v1"); e("v_add_u32 v10, v29, v4")
    for i in range(20): e(f"ds_write_b128 v10, v[{ACC+4*i}:{ACC+4*i+3}] offset:{i*1024}")
    srd(12, 40, 41, X_SZ)
    e("s_lshl_b32 s37, s22, 10"); e("v_add_u32 v10, s37, v4")
    e("s_waitcnt lgkmcnt(0)"); e("s_barrier")
    e(f"v_add_u32 v13, {2*WB}, v10")
    def rd(nb):
        r = 32+16*nb
        for k in range(4): e(f"ds_read_b128 v[{r+4*k}:{r+4*k+3}], v{(10,13)[k>>1]} offset:{nb*4096+(k&1)*WB}")
    for nb in range(3): rd(nb)
    for nb in range(5):
        r = 32+16*nb
        e(f"s_waitcnt lgkmcnt({min(8,4*(4-nb))})")
        if nb+3 < 5: rd(nb+3)
        e(f"v_lshlrev_b32 v6, 16, v{14+2*nb}"); e(f"v_and_b32 v7, 0xffff0000, v{14+2*nb}")
        e(f"v_lshlrev_b32 v8, 16, v{15+2*nb}"); e(f"v_and_b32 v9, 0xffff0000, v{15+2*nb}")
        for j in range(4):
            e(f"v_add_f32 v{r+4+j}, v{r+4+j}, v{r+8+j}"); e(f"v_add_f32 v{r+4+j}, v{r+4+j}, v{r+12+j}")
            bf16r(f"v{r+4+j}", f"v{r+4+j}"); bf16r(f"v{r+j}", f"v{r+j}")
            e(f"v_add_f32 v{r+j}, v{6+j}, v{r+j}"); bf16r(f"v{r+j}", f"v{r+j}")
            e(f"v_add_f32 v{r+j}, v{r+j}, v{r+4+j}")
        e(f"v_cvt_pk_bf16_f32 v{r}, v{r}, v{r+1}"); e(f"v_cvt_pk_bf16_f32 v{r+1}, v{r+2}, v{r+3}")
        e(f"buffer_store_dwordx2 v[{r}:{r+1}], v11, s[12:15], 0 offen offset:{32*nb}"+os.environ.get("GT",""))
    lab("G2_done"); e("s_endpgm")
    kdesc("g2_kernel", 256)

HEAD = open("parallel_sum__sliding_local_dilated__glu_gated_swiglu__prompt.s.ref").read().split("; @launch")[0]
gen_prep(); gen_g1(); gen_g2()
txt = HEAD + """; @launch kernel=prep_kernel grid=(408,1,1) block=(256,1,1) lds=36864
; @launch kernel=g1_kernel grid=(256,1,1) block=(512,1,1) lds=163840
; @launch kernel=g2_kernel grid=(256,1,1) block=(256,1,1) lds=81920
.amdgcn_target "amdgcn-amd-amdhsa--gfx950"
.text
""" + "\n".join(OUT) + '\n.section .rodata,"a"\n' + "\n".join(DESCS) + "\n"
open(os.environ.get("GO","k.s"), "w").write(txt)
```

```python
import sys, os
X=os.environ.get("GX","")
OUT = []
def e(s): OUT.append("    " + s)
def lab(s): OUT.append(s + ":")

XP_OFF, WQ_OFF, WF_OFF, W2_OFF, AP_OFF = 0x0, 0x300000, 0x600000, 0xA00000, 0xD00000
XP_SZ, WQ_SZ, WF_SZ, W2_SZ, AP_SZ = 128*20*1024, 8*20*15*1024, 16*20*12*1024, 8*68*5*1024, 128*68*1024
CNT_OFF = AP_OFF + AP_SZ
WS_SZ = CNT_OFF + 4096
X_SZ = 2048*1280

def srd(d, lo, hi, size, add=0):
    if add:
        e(f"s_add_u32 s{d}, s{lo}, {add:#x}")
        e(f"s_addc_u32 s{d+1}, s{hi}, 0")
    else:
        e(f"s_mov_b32 s{d}, s{lo}")
        e(f"s_mov_b32 s{d+1}, s{hi}")
    e(f"s_and_b32 s{d+1}, s{d+1}, 0xffff")
    e(f"s_mov_b32 s{d+2}, {size:#x}")
    e(f"s_mov_b32 s{d+3}, 0x00020000")

def kstart(name):
    OUT.append(f".globl {name}\n.p2align 8\n.type {name},@function\n{name}:")

DESCS = []
def kdesc(name, vgpr, sgpr=100):
    acc = ((vgpr + 3)//4)*4
    DESCS.append(f""".p2align 6
.amdhsa_kernel {name}
  .amdhsa_next_free_vgpr {vgpr}
  .amdhsa_next_free_sgpr {sgpr}
  .amdhsa_accum_offset {acc}
  .amdhsa_group_segment_fixed_size 0
  .amdhsa_kernarg_size 80
  .amdhsa_user_sgpr_count 2
  .amdhsa_user_sgpr_kernarg_segment_ptr 1
  .amdhsa_system_sgpr_workgroup_id_x 1
.end_amdhsa_kernel""")

def bf16r(dst, src):
    e(f"v_cvt_pk_bf16_f32 {dst}, {src}, {src}")
    e(f"v_lshlrev_b32 {dst}, 16, {dst}")

def divc(q, r, src, d, maxv):
    for sh in range(8, 25):
        m = ((1 << sh) + d - 1)//d
        if m >= (1 << 24) or m*(maxv-1) >= (1 << 32): continue
        if all((i*m) >> sh == i//d for i in range(maxv)): break
    else: raise Exception("no magic")
    e(f"v_mul_u32_u24 {q}, {m}, {src}"); e(f"v_lshrrev_b32 {q}, {sh}, {q}")
    if r:
        e(f"v_mul_u32_u24 {r}, {d}, {q}"); e(f"v_sub_u32 {r}, {src}, {r}")

def gen_prep():
    kstart("prep_kernel")
    e("s_cmp_ge_u32 s2, 408"); e("s_cbranch_scc1 P_done")
    e("s_load_dwordx2 s[6:7], s[0:1], 72")
    e("s_cmp_ge_u32 s2, 128"); e("s_cbranch_scc1 P_pack")
    e("s_load_dwordx2 s[4:5], s[0:1], 0")
    e("v_lshrrev_b32 v1, 4, v0")
    e("v_and_b32 v2, 15, v0")
    e("s_lshl_b32 s3, s2, 4")
    e("v_add_u32 v3, s3, v1")
    e("v_mul_u32_u24 v3, 1280, v3"); e("v_lshl_add_u32 v3, v2, 4, v3")
    e("v_mul_u32_u24 v4, 272, v2"); e("v_lshl_add_u32 v4, v1, 4, v4")
    e("v_lshrrev_b32 v5, 6, v0"); e("v_and_b32 v6, 63, v0")
    e("v_lshrrev_b32 v7, 4, v6"); e("v_mul_u32_u24 v79, 20, v5"); e("v_add_u32 v7, v7, v79"); e("v_mul_u32_u24 v7, 272, v7")
    e("v_lshl_add_u32 v7, v2, 4, v7")
    e("v_lshlrev_b32 v6, 4, v6"); e("v_mul_u32_u24 v5, 5120, v5"); e("v_add_u32 v6, v6, v5")
    e("s_mul_i32 s3, s2, 20480")
    e("s_waitcnt lgkmcnt(0)")
    srd(8, 4, 5, X_SZ)
    srd(12, 6, 7, XP_SZ, XP_OFF)
    for j in range(5): e(f"buffer_load_dwordx4 v[{8+4*j}:{11+4*j}], v3, s[8:11], 0 offen offset:{256*j}")
    e("s_cmp_lg_u32 s2, 0"); e("s_cbranch_scc1 P_nz")
    srd(16, 6, 7, 4096, CNT_OFF)
    e("v_lshlrev_b32 v28, 4, v0"); e("v_mov_b32 v29, 0")
    e("buffer_store_dword v29, v28, s[16:19], 0 offen sc1")
    lab("P_nz")
    e("s_waitcnt vmcnt(0)")
    for i in range(20):
        e(f"v_lshlrev_b32 v{32+2*i}, 16, v{8+i}")
        e(f"v_and_b32 v{33+2*i}, 0xffff0000, v{8+i}")
    def rowsum(v):
        for k in (8,4,2,1):
            e("s_nop 1")
            e(f"v_add_f32_dpp {v}, {v}, {v} row_ror:{k} row_mask:0xf bank_mask:0xf")
    e("v_add_f32 v30, v32, v33"); e("v_add_f32 v31, v34, v35")
    for i in range(4,40,2): e(f"v_add_f32 v30, v30, v{32+i}"); e(f"v_add_f32 v31, v31, v{33+i}")
    e("v_add_f32 v30, v30, v31")
    rowsum("v30")
    e("v_mov_b32 v72, 0x3acccccd")
    e("v_mul_f32 v73, v30, v72")
    e("v_mov_b32 v30, 0"); e("v_mov_b32 v31, 0")
    for i in range(0,40,2):
        e(f"v_sub_f32 v74, v{32+i}, v73"); e(f"v_sub_f32 v75, v{33+i}, v73")
        e("v_fmac_f32 v30, v74, v74"); e("v_fmac_f32 v31, v75, v75")
    e("v_add_f32 v30, v30, v31")
    rowsum("v30")
    e("v_mul_f32 v75, v30, v72")
    bf16r("v73", "v73"); bf16r("v75", "v75")
    e("v_add_f32 v75, 0x3727c5ac, v75")
    bf16r("v75", "v75")
    e("v_sqrt_f32 v75, v75"); e("s_nop 0")
    bf16r("v75", "v75")
    e("v_rcp_f32 v76, v75"); e("s_nop 0")
    for i in range(40):
        e(f"v_sub_f32 v{32+i}, v{32+i}, v73")
        bf16r(f"v{32+i}", f"v{32+i}")
        e(f"v_mul_f32 v77, v{32+i}, v76")
        e(f"v_fma_f32 v78, -v77, v75, v{32+i}")
        e(f"v_fma_f32 v{32+i}, v78, v76, v77")
    for i in range(20): e(f"v_cvt_pk_bf16_f32 v{8+i}, v{32+2*i}, v{33+2*i}")
    for j in range(5): e(f"ds_write_b128 v4, v[{8+4*j}:{11+4*j}] offset:{j*16*272}")
    e("s_waitcnt lgkmcnt(0)"); e("s_barrier")
    for j in range(5): e(f"ds_read_b128 v[{8+4*j}:{11+4*j}], v7 offset:{j*4*272}")
    for j in range(5):
        e(f"s_waitcnt lgkmcnt({4-j})")
        e(f"buffer_store_dwordx4 v[{8+4*j}:{11+4*j}], v6, s[12:15], s3 offen offset:{1024*j if j<4 else 0}"+" sc1")
        if j == 3: e("s_add_u32 s3, s3, 4096")
    e("s_endpgm")
    lab("P_pack")
    e("s_sub_u32 s3, s2, 128")
    e("s_mov_b32 s40, 0x05040100"); e("s_mov_b32 s41, 0x07060302")
    e("s_cmp_ge_u32 s3, 195"); e("s_cbranch_scc1 P_w2o")
    e("s_cmp_ge_u32 s3, 75"); e("s_cbranch_scc1 P_w13")
    e("s_load_dwordx2 s[4:5], s[0:1], 8")
    e("s_lshl_b32 s3, s3, 2"); e("v_lshrrev_b32 v1, 6, v0"); e("v_add_u32 v1, s3, v1")
    divc("v2", "v3", "v1", 15, 300)
    e("v_bfe_u32 v8, v0, 4, 2"); e("v_lshl_add_u32 v2, v2, 2, v8"); e("v_and_b32 v8, 15, v0"); e("v_lshl_add_u32 v3, v3, 4, v8")
    divc("v4", "v5", "v3", 80, 240)
    divc("v6", "v7", "v5", 10, 80)
    e("v_mul_u32_u24 v4, 5, v4"); e("v_lshrrev_b32 v8, 1, v7"); e("v_add_u32 v4, v4, v8")
    e("v_lshrrev_b32 v8, 2, v2"); e("v_mul_u32_u24 v6, 20, v6"); e("v_add_u32 v6, v6, v8")
    e("v_mul_u32_u24 v6, 15, v6"); e("v_add_u32 v6, v6, v4")
    e(f"s_mov_b32 s20, {WQ_OFF}"); e("s_mov_b32 s21, 3840"); e(f"s_mov_b32 s22, {640*3840}")
    e("v_mul_u32_u24 v10, 8*3840, v2"); e("v_lshl_add_u32 v10, v3, 4, v10"); e("v_add_u32 v11, 4*3840, v10")
    e("s_branch P_go")
    lab("P_w13")
    e("s_sub_u32 s3, s3, 75"); e("s_cmp_ge_u32 s3, 60"); e("s_cselect_b32 s23, 3, 0"); e("s_cselect_b32 s24, 40, 32"); e("s_cselect_b32 s25, 60, 0")
    e("s_sub_u32 s3, s3, s25")
    e("s_load_dwordx2 s[4:5], s[0:1], s24")
    e("s_lshl_b32 s3, s3, 2"); e("v_lshrrev_b32 v1, 6, v0"); e("v_add_u32 v1, s3, v1")
    divc("v2", "v3", "v1", 12, 240)
    e("v_bfe_u32 v8, v0, 4, 2"); e("v_lshl_add_u32 v2, v2, 2, v8"); e("v_and_b32 v8, 15, v0"); e("v_lshl_add_u32 v3, v3, 4, v8")
    divc("v6", "v5", "v3", 12, 192)
    divc("v4", "v7", "v5", 6, 12)
    e("v_mul_u32_u24 v4, 6, v4"); e("v_lshrrev_b32 v8, 1, v7"); e("v_add_u32 v4, v4, v8"); e("v_add_u32 v4, s23, v4")
    e("v_lshrrev_b32 v8, 2, v2"); e("v_mul_u32_u24 v6, 20, v6"); e("v_add_u32 v6, v6, v8")
    e("v_mul_u32_u24 v6, 12, v6"); e("v_add_u32 v6, v6, v4")
    e(f"s_mov_b32 s20, {WF_OFF}"); e("s_mov_b32 s21, 3072"); e(f"s_mov_b32 s22, {640*3072}")
    e("v_mul_u32_u24 v10, 8*3072, v2"); e("v_lshl_add_u32 v10, v3, 4, v10"); e("v_add_u32 v11, 4*3072, v10")
    e("s_branch P_go")
    lab("P_w2o")
    e("s_sub_u32 s3, s3, 195"); e("s_cmp_ge_u32 s3, 25"); e("s_cselect_b32 s24, 48, 16"); e("s_cselect_b32 s25, 25, 0"); e("s_cselect_b32 s26, 1, 0")
    e("s_sub_u32 s3, s3, s25")
    e("s_load_dwordx2 s[4:5], s[0:1], s24")
    e("s_lshl_b32 s3, s3, 2"); e("v_lshrrev_b32 v1, 6, v0"); e("v_add_u32 v1, s3, v1")
    divc("v2", "v3", "v1", 5, 240)
    e("v_bfe_u32 v8, v0, 4, 2"); e("v_lshl_add_u32 v2, v2, 2, v8"); e("v_and_b32 v8, 15, v0"); e("v_lshl_add_u32 v3, v3, 4, v8")
    divc("v6", "v7", "v3", 10, 80)
    e("v_lshrrev_b32 v4, 1, v7")
    e("v_lshrrev_b32 v8, 2, v2")
    e("s_mul_i32 s27, s26, 20")
    e("v_mul_u32_u24 v6, 68, v6"); e("v_add_u32 v6, v6, v8"); e("v_add_u32 v6, s27, v6")
    e("v_mul_u32_u24 v6, 5, v6"); e("v_add_u32 v6, v6, v4")
    e(f"s_mov_b32 s20, {W2_OFF}"); e("s_mov_b32 s21, 1280"); e(f"s_mov_b32 s22, {640*1280}")
    e("s_cmp_eq_u32 s26, 0"); e("s_cbranch_scc1 P_wo")
    e(f"s_mov_b32 s22, {1536*1280}")
    divc("v12", "v13", "v8", 3, 48)
    e("v_and_b32 v14, 3, v2")
    e("v_mul_u32_u24 v12, 96, v12"); e("v_lshl_add_u32 v12, v14, 2, v12")
    e("v_cmp_eq_u32 vcc, 1, v13"); e("v_mov_b32 v15, 48"); e("v_cndmask_b32 v14, 0, v15, vcc")
    e("v_cmp_eq_u32 vcc, 2, v13"); e("v_mov_b32 v16, 32"); e("v_cndmask_b32 v14, v14, v16, vcc")
    e("v_mov_b32 v16, 16"); e("v_cndmask_b32 v15, v16, v15, vcc")
    e("v_add_u32 v12, v12, v14")
    e("v_add_u32 v13, v12, v15")
    e("v_mul_u32_u24 v10, 1280, v12"); e("v_lshl_add_u32 v10, v3, 4, v10")
    e("v_mul_u32_u24 v11, 1280, v13"); e("v_lshl_add_u32 v11, v3, 4, v11")
    e("s_branch P_go")
    lab("P_wo")
    e("v_mul_u32_u24 v10, 8*1280, v2"); e("v_lshl_add_u32 v10, v3, 4, v10"); e("v_add_u32 v11, 4*1280, v10")
    lab("P_go")
    e("v_lshlrev_b32 v6, 10, v6"); e("v_and_b32 v8, 3, v2"); e("v_lshl_add_u32 v6, v8, 8, v6")
    e("v_and_b32 v8, 1, v7"); e("v_lshl_add_u32 v6, v8, 7, v6"); e("v_add_u32 v6, s20, v6")
    e("s_lshl_b32 s24, s21, 1"); e("s_add_u32 s25, s24, s21")
    e("s_waitcnt lgkmcnt(0)")
    e("s_mov_b32 s8, s4"); e("s_and_b32 s9, s5, 0xffff"); e("s_mov_b32 s10, s22"); e("s_mov_b32 s11, 0x00020000")
    srd(12, 6, 7, WS_SZ)
    for i in range(8):
        so = ("0","s21","s24","s25")[i&3]
        e(f"buffer_load_dwordx4 v[{16+4*i}:{19+4*i}], v{10+(i>>2)}, s[8:11], {so} offen")
    e("s_waitcnt vmcnt(0)")
    for c_ in range(8):
        for q in range(4):
            e(f"v_perm_b32 v{48+4*c_+q}, v{16+4*(2*q+1)+(c_>>1)}, v{16+4*(2*q)+(c_>>1)}, s{40+(c_&1)}")
    e("v_lshrrev_b32 v1, 6, v0"); e("v_mul_u32_u24 v1, 9216, v1")
    e("v_bfe_u32 v2, v0, 1, 3"); e("v_bfe_u32 v3, v0, 4, 2"); e("v_and_b32 v4, 1, v0")
    e("v_lshlrev_b32 v2, 3, v2"); e("v_lshl_add_u32 v2, v3, 1, v2"); e("v_add_u32 v2, v2, v4")
    e("v_mul_u32_u24 v2, 144, v2"); e("v_add_u32 v2, v2, v1")
    for c_ in range(8): e(f"ds_write_b128 v2, v[{48+4*c_}:{51+4*c_}] offset:{16*c_}")
    e("v_bfe_u32 v3, v0, 3, 3"); e("v_mul_u32_u24 v3, 144, v3"); e("v_and_b32 v4, 7, v0"); e("v_lshl_add_u32 v3, v4, 4, v3"); e("v_add_u32 v3, v3, v1")
    e("v_and_b32 v4, 63, v0"); e("v_lshlrev_b32 v4, 4, v4")
    for i in range(8): e(f"v_readlane_b32 s{48+i}, v6, {2*i}")
    e("s_waitcnt lgkmcnt(0)")
    for i in range(8): e(f"ds_read_b128 v[{16+4*i}:{19+4*i}], v3 offset:{1152*i}")
    for i in range(8):
        e(f"s_waitcnt lgkmcnt({7-i})")
        e(f"buffer_store_dwordx4 v[{16+4*i}:{19+4*i}], v4, s[12:15], s{48+i} offen"+" sc1")
    lab("P_done"); e("s_endpgm")
    kdesc("prep_kernel", 80)

STG = 28672; NB = 5; NT = 20
def gen_g1():
    kstart("g1_kernel")
    e("s_cmp_ge_u32 s2, 256"); e("s_cbranch_scc1 G1_done")
    if 'few' in X: e("s_and_b32 s3, s2, 0x78"); e("s_cmp_lg_u32 s3, 0"); e("s_cbranch_scc1 G1_done")
    if 'clk' in X: e("s_memtime s[60:61]"); e("s_load_dwordx2 s[64:65], s[0:1], 64")
    e("s_load_dwordx2 s[18:19], s[0:1], 72")
    e("s_and_b32 s3, s2, 7"); e("s_lshr_b32 s20, s2, 3")
    e("v_lshrrev_b32 v1, 6, v0"); e("v_and_b32 v2, 63, v0"); e("s_nop 0")
    e("v_readfirstlane_b32 s22, v1")
    e("v_lshlrev_b32 v4, 4, v2")
    e("s_waitcnt lgkmcnt(0)")
    srd(8, 18, 19, XP_SZ, XP_OFF)
    e("s_mov_b32 s38, s10")
    e("s_mov_b32 s35, -4"); e("s_mov_b32 s36, 0"); e("s_mov_b32 s37, 0")
    e("s_cmp_ge_u32 s20, 16"); e("s_cbranch_scc1 G1_qkv")
    cnt=[0]
    srd(12, 18, 19, WF_SZ, WF_OFF)
    e("s_mov_b32 s39, s14")
    e("s_lshl_b32 s24, s3, 1"); e("s_and_b32 s25, s20, 1"); e("s_add_u32 s24, s24, s25")
    e("s_lshr_b32 s21, s20, 1")
    e("s_lshl_b32 s25, s21, 4"); e("s_add_u32 s25, s25, s22"); e("s_mul_i32 s32, s25, 20480")
    e("s_mul_i32 s33, s24, 245760"); e("s_lshl_b32 s25, s22, 10"); e("s_add_u32 s33, s33, s25")
    e("s_lshl_b32 s30, s22, 10")
    e("s_mov_b32 s44, s12"); e("s_mov_b32 s45, s13"); e("s_mov_b32 s47, s15")
    e("s_cmp_lt_u32 s22, 4"); e("s_cselect_b32 s43, s39, 0"); e("s_cselect_b32 s42, 1, 0")
    e("s_lshl_b32 s25, s22, 10"); e(f"s_add_u32 s25, s25, {NB*STG}"); e("s_add_u32 s26, s30, 24576"); e("s_cmp_lt_u32 s22, 4"); e("s_cselect_b32 s29, s26, s25")
    def dmaF():
        return ["s_cmp_lt_i32 s35, 16", "s_cselect_b32 s10, s38, 0", "s_cselect_b32 s14, s39, 0", "s_cselect_b32 s46, s43, 0",
          "s_add_u32 s40, s30, s36", "s_mov_b32 m0, s40", "s_add_u32 s40, s40, 8192", f"s_add_u32 s41, s32, {8*20480}",
          "buffer_load_dwordx4 v4, s[8:11], s32 offen lds",
          "s_mov_b32 m0, s40", "s_add_u32 s40, s40, 8192",
          "buffer_load_dwordx4 v4, s[8:11], s41 offen lds",
          "s_mov_b32 m0, s40", "s_mul_i32 s40, s36, s42", "s_add_u32 s41, s33, 8192",
          "buffer_load_dwordx4 v4, s[12:15], s33 offen lds",
          "s_add_u32 s40, s40, s29", "s_mov_b32 m0, s40", "s_add_u32 s32, s32, 1024",
          "buffer_load_dwordx4 v4, s[44:47], s41 offen lds",
          "s_add_u32 s33, s33, 12288",
          f"s_add_u32 s36, s36, {STG}", f"s_cmp_eq_u32 s36, {NB*STG}", "s_cselect_b32 s36, 0, s36"]
    def waitF(k): e(f"s_waitcnt vmcnt({4*k})")
    e("v_and_b32 v10, 3, v1"); e("v_lshl_add_u32 v18, v10, 12, v4")
    e("v_lshrrev_b32 v10, 2, v1"); e("v_mul_u32_u24 v10, 6144, v10"); e("v_add_u32 v19, v10, v4"); e("v_add_u32 v19, 16384, v19")
    def addrs():
        e("v_add_u32 v22, s37, v18"); e("v_add_u32 v23, s37, v19"); e("v_add_u32 v24, s37, v4")
        e(f"s_add_u32 s37, s37, {STG}"); e(f"s_cmp_eq_u32 s37, {NB*STG}"); e("s_cselect_b32 s37, 0, s37")
    ACC = 32
    def mainloop(tag, dma, wait, Ard, Wrd, pairs, FR):
        na, nw = len(Ard), len(Wrd); fsz = 4*(na+nw)
        def reads(fs):
            L=[]
            b = FR + fsz*fs
            for i,(v,o) in enumerate(Ard): L.append(f"ds_read_b128 v[{b+4*i}:{b+4*i+3}], {v} offset:{o}")
            for i,(v,o) in enumerate(Wrd): L.append(f"ds_read_b128 v[{b+4*na+4*i}:{b+4*na+4*i+3}], {v} offset:{o}")
            return L
        for i in range(4*len(pairs)): e(f"v_mov_b32 v{ACC+i}, 0")
        lab(f"{tag}_pro")
        for d in dma(): e(d)
        e("s_add_u32 s35, s35, 1"); e("s_cmp_lt_i32 s35, 0"); e(f"s_cbranch_scc1 {tag}_pro")
        wait(3); addrs(); e("s_barrier")
        for r in reads(0): e(r)
        if 'clk' in X: e("s_memtime s[80:81]")
        lab(f"{tag}_loop")
        DPM = int(os.environ.get("DPM","1"))
        for fs in range(2):
            wait(2); addrs(); e("s_waitcnt lgkmcnt(0)"); e("s_barrier")
            Dq = dma(); R = reads(1-fs)
            b = FR + fsz*fs
            n = len(pairs)
            for p,(ai,wi) in enumerate(pairs):
                a_ = ACC+4*p; w = b+4*na+4*wi; x = b+4*ai
                e(f"v_mfma_f32_16x16x32_bf16 v[{a_}:{a_+3}], v[{w}:{w+3}], v[{x}:{x+3}], v[{a_}:{a_+3}]")
                if R: e(R.pop(0))
                for _ in range(DPM):
                    if Dq: e(Dq.pop(0))
            for r in R: e(r)
            for d in Dq: e(d)
            e("s_add_u32 s35, s35, 1")
        e(f"s_cmp_lt_i32 s35, {NT}"); e(f"s_cbranch_scc1 {tag}_loop")
        e("s_waitcnt lgkmcnt(0)")
        if 'clk' in X: e("s_memtime s[82:83]")
        e("s_waitcnt vmcnt(0)")
    def clkfin():
        if 'clk' not in X: return
        e("s_waitcnt vmcnt(0)")
        e("s_memtime s[66:67]"); e("s_waitcnt lgkmcnt(0)")
        e("s_sub_u32 s66, s66, s60"); e("s_sub_u32 s80, s80, s60"); e("s_sub_u32 s82, s82, s60"); e("s_sub_u32 s84, s84, s60")
        srd(72, 64, 65, 256)
        e("v_mov_b32 v60, s80"); e("v_mov_b32 v61, s82"); e("v_mov_b32 v62, s84"); e("v_mov_b32 v63, s66"); e("v_mov_b32 v64, 0")
        cnt[0]+=1
        e("s_cmp_gt_u32 s22, 3"); e("s_cbranch_scc1 G1_done")
        e("s_and_b32 s70, s2, 0x7f"); e("s_cmp_lg_u32 s70, 0"); e("s_cbranch_scc1 G1_done")
        e("s_lshr_b32 s70, s2, 7"); e("s_lshl_b32 s70, s70, 6"); e("s_lshl_b32 s71, s22, 4"); e("s_add_u32 s70, s70, s71")
        e("buffer_store_dwordx4 v[60:63], v64, s[72:75], s70 offen")
    pairsF = [(mb, nb) for nb in range(6) for mb in range(4)]
    mainloop("G1F", dmaF, waitF, [("v22", 1024*i) for i in range(4)], [("v23", 1024*i) for i in range(6)], pairsF, 128)
    srd(8, 18, 19, AP_SZ, AP_OFF)
    e("s_lshl_b32 s25, s21, 4"); e("s_and_b32 s26, s22, 3"); e("s_lshl_b32 s26, s26, 2"); e("s_add_u32 s25, s25, s26")
    e("s_mul_i32 s25, s25, 69632")
    e("s_mul_i32 s26, s24, 3072"); e("s_add_u32 s25, s25, s26"); e("s_add_u32 s25, s25, 20480")
    e("s_lshr_b32 s26, s22, 2")
    e("s_lshl_b32 s27, s26, 10"); e("s_add_u32 s27, s27, s25")
    e("s_lshl_b32 s28, s26, 3"); e("s_add_u32 s28, s28, s25"); e("s_add_u32 s28, s28, 2048")
    e("s_mov_b32 s36, 0xbfb8aa3b")
    e("s_nop 4")
    T = 128
    for mb in range(4):
        idx = []
        for b in range(3):
            for j in range(4): idx.append((ACC+(b*4+mb)*4+j, ACC+((b+3)*4+mb)*4+j))
        for k,(g,u) in enumerate(idx): bf16r(f"v{g}", f"v{g}")
        for k,(g,u) in enumerate(idx): e(f"v_mul_f32 v{T+k}, s36, v{g}")
        for k in range(12): e(f"v_exp_f32 v{T+k}, v{T+k}")
        for k,(g,u) in enumerate(idx): bf16r(f"v{u}", f"v{u}")
        for k in range(12): e(f"v_add_f32 v{T+k}, 1.0, v{T+k}")
        for k in range(12): e(f"v_rcp_f32 v{T+k}, v{T+k}")
        e("s_nop 0")
        for k,(g,u) in enumerate(idx): e(f"v_mul_f32 v{T+k}, v{g}, v{T+k}")
        for k in range(12): bf16r(f"v{T+k}", f"v{T+k}")
        for k,(g,u) in enumerate(idx): e(f"v_mul_f32 v{T+k}, v{T+k}, v{u}")
        O = 144+8*mb
        for k in range(6): e(f"v_cvt_pk_bf16_f32 v{O+k}, v{T+2*k}, v{T+2*k+1}")
        e(f"buffer_store_dwordx4 v[{O}:{O+3}], v4, s[8:11], s27 offen"+" sc1")
        e(f"buffer_store_dwordx2 v[{O+4}:{O+5}], v4, s[8:11], s28 offen"+" sc1")
        if mb < 3: e("s_add_u32 s27, s27, 69632"); e("s_add_u32 s28, s28, 69632")
    e("s_mov_b32 s48, s21")
    e("s_branch G1_sync")
    lab("G1_qkv")
    srd(12, 18, 19, WQ_SZ, WQ_OFF)
    e("s_mov_b32 s39, s14")
    e("s_sub_u32 s21, s20, 16")
    e("s_lshl_b32 s25, s21, 3"); e("s_add_u32 s25, s25, s22"); e("s_sub_u32 s25, s25, 1"); e("s_max_i32 s25, s25, 0")
    e("s_mul_i32 s32, s25, 20480")
    e("s_mul_i32 s33, s3, 307200"); e("s_lshl_b32 s25, s22, 10"); e("s_add_u32 s33, s33, s25")
    e("s_lshl_b32 s25, s21, 3"); e("s_add_u32 s25, s25, 7"); e("s_mul_i32 s25, s25, 20480")
    e("s_add_u32 s26, s33, 7168")
    e("s_mov_b32 s42, 15360"); e("s_cmp_eq_u32 s22, 0"); e("s_cselect_b32 s34, s25, s26"); e("s_cselect_b32 s42, 1024, s42")
    e("s_cselect_b32 s44, s8, s12"); e("s_cselect_b32 s45, s9, s13"); e("s_cselect_b32 s43, s38, s39"); e("s_mov_b32 s47, 0x00020000")
    e("s_lshl_b32 s30, s22, 10")
    e("s_add_u32 s31, s30, 9216")
    e("s_add_u32 s25, s31, 7168"); e("s_cmp_eq_u32 s22, 0"); e("s_cselect_b32 s29, 8192, s25")
    def dmaQ():
        return ["s_cmp_lt_i32 s35, 16", "s_cselect_b32 s10, s38, 0", "s_cselect_b32 s14, s39, 0", "s_cselect_b32 s46, s43, 0",
          "s_add_u32 s40, s30, s36", "s_mov_b32 m0, s40", "s_add_u32 s40, s31, s36",
          "buffer_load_dwordx4 v4, s[8:11], s32 offen lds",
          "s_mov_b32 m0, s40", "s_add_u32 s40, s29, s36",
          "buffer_load_dwordx4 v4, s[12:15], s33 offen lds",
          "s_mov_b32 m0, s40", "s_add_u32 s32, s32, 1024",
          "buffer_load_dwordx4 v4, s[44:47], s34 offen lds",
          "s_add_u32 s33, s33, 15360", "s_add_u32 s34, s34, s42",
          f"s_add_u32 s36, s36, {STG}", f"s_cmp_eq_u32 s36, {NB*STG}", "s_cselect_b32 s36, 0, s36"]
    def waitQ(k): e(f"s_waitcnt vmcnt({3*k})")
    e("v_lshrrev_b32 v10, 1, v1"); e("v_lshlrev_b32 v10, 11, v10"); e("v_add_u32 v18, v10, v4"); e("v_add_u32 v18, 1024, v18")
    e("v_and_b32 v10, 1, v1"); e("v_lshlrev_b32 v10, 13, v10"); e("v_add_u32 v19, v10, v4"); e("v_add_u32 v19, 9216, v19")
    e("s_cmp_eq_u32 s22, 1"); e("s_cbranch_scc1 G1_v2")
    e("s_cmp_eq_u32 s22, 2"); e("s_cbranch_scc1 G1_v3")
    e("s_and_b32 s25, s22, 1"); e("s_cmp_eq_u32 s25, 1"); e("s_cbranch_scc1 G1_v1")
    def qepi(nw, halo):
        e("s_barrier")
        e("v_and_b32 v10, 15, v2"); e("v_mul_u32_u24 v10, 520, v10"); e("v_lshrrev_b32 v11, 4, v2"); e("v_lshl_add_u32 v12, v11, 3, v10")
        e("v_and_b32 v11, 1, v1"); e("v_lshl_add_u32 v12, v11, 8, v12")
        e("v_lshrrev_b32 v11, 1, v1"); e("v_mul_u32_u24 v11, 16640, v11"); e("v_add_u32 v10, v12, v11"); e("v_add_u32 v10, 8320, v10")
        p = 0
        for wi in range(nw):
            for mb in range(2):
                g = ACC+4*p; p += 1
                e(f"v_cvt_pk_bf16_f32 v{g}, v{g}, v{g+1}"); e(f"v_cvt_pk_bf16_f32 v{g+1}, v{g+2}, v{g+3}")
                e(f"ds_write_b64 v10, v[{g}:{g+1}] offset:{mb*8320+wi*32}")
        for wi in halo:
            g = ACC+4*p; p += 1
            e(f"v_cvt_pk_bf16_f32 v{g}, v{g}, v{g+1}"); e(f"v_cvt_pk_bf16_f32 v{g+1}, v{g+2}, v{g+3}")
            e(f"ds_write_b64 v12, v[{g}:{g+1}] offset:{wi*32}")
        e("s_branch G1_att")
    A2 = [("v22", 0), ("v22", 1024)]
    def W(n): return [("v23", 1024*i) for i in range(n)]
    mainloop("G1Q0", dmaQ, waitQ, A2, W(8), [(mb,wi) for wi in range(8) for mb in range(2)], 128); qepi(8, [])
    lab("G1_v1")
    mainloop("G1Q1", dmaQ, waitQ, A2, W(7), [(mb,wi) for wi in range(7) for mb in range(2)], 128); qepi(7, [])
    lab("G1_v2")
    mainloop("G1Q2", dmaQ, waitQ, A2+[("v24",0)], W(7), [(mb,wi) for wi in range(7) for mb in range(2)]+[(2,wi) for wi in range(7)], 128); qepi(7, list(range(7)))
    lab("G1_v3")
    mainloop("G1Q3", dmaQ, waitQ, A2+[("v24",0)], W(8), [(mb,wi) for wi in range(8) for mb in range(2)]+[(2,wi) for wi in (5,6,7)], 128); qepi(8, [5,6,7])
    lab("G1_att")
    srd(12, 18, 19, AP_SZ, AP_OFF)
    e("s_and_b32 s24, s22, 3"); e("s_lshr_b32 s25, s22, 2")
    e("s_lshl_b32 s26, s25, 6"); e("v_add_u32 v3, s26, v2")
    e("s_lshl_b32 s27, s21, 7"); e("v_add_u32 v2, s27, v3")
    e("s_mul_i32 s26, s24, 40"); e("s_add_u32 s26, s26, 16*520")
    e("v_mul_u32_u24 v4, 520, v3"); e("v_add_u32 v4, s26, v4")
    e("v_subrev_u32 v5, 4160, v4")
    e("s_waitcnt lgkmcnt(0)"); e("s_barrier")
    if 'clk' in X: e("s_memtime s[84:85]")
    Q=10; K=20; L=100; V=140
    for i in range(5): e(f"ds_read_b64 v[{Q+2*i}:{Q+2*i+1}], v4 offset:{8*i}")
    def rowaddr(w):
        if w == 0: return "v4", 0
        if w <= 4: return "v5", 4160-1040*w
        return "v6", 8320-1040*w
    e("v_subrev_u32 v6, 8320, v4")
    for w in range(8):
        a,o = rowaddr(w)
        for i in range(5): e(f"ds_read_b64 v[{K+10*w+2*i}:{K+10*w+2*i+1}], {a} offset:{o+160+8*i}")
    e("s_mov_b32 s20, 0x3e64f92e"); e("s_mov_b32 s23, 0xce6e0000")
    for w in range(8): e(f"v_mov_b32 v{L+w}, 0")
    e("s_waitcnt lgkmcnt(0)")
    for w in range(8):
        a,o = rowaddr(w)
        for i in range(5): e(f"ds_read_b64 v[{V+10*w+2*i}:{V+10*w+2*i+1}], {a} offset:{o+320+8*i}")
    for i in range(10):
        for w in range(8): e(f"v_dot2_f32_bf16 v{L+w}, v{Q+i}, v{K+10*w+i}, v{L+w}")
    e("v_mov_b32 v7, s23")
    e("s_nop 1")
    for w in range(8):
        bf16r(f"v{L+w}", f"v{L+w}"); e(f"v_mul_f32 v{L+w}, s20, v{L+w}"); bf16r(f"v{L+w}", f"v{L+w}")
        if w:
            e(f"v_cmp_le_u32 vcc, {2*w}, v2"); e("s_nop 1")
            e(f"v_cndmask_b32 v{L+w}, v7, v{L+w}, vcc")
    e(f"v_max_f32 v7, v{L}, v{L+1}")
    for w in range(2,8): e(f"v_max_f32 v7, v7, v{L+w}")
    e("s_mov_b32 s23, 0x3fb8aa3b")
    e("v_mov_b32 v8, 0")
    for w in range(8):
        e(f"v_sub_f32 v{L+w}, v{L+w}, v7"); e(f"v_mul_f32 v{L+w}, s23, v{L+w}"); e(f"v_exp_f32 v{L+w}, v{L+w}")
    for w in range(8): e(f"v_add_f32 v8, v8, v{L+w}")
    e("v_rcp_f32 v8, v8"); e("s_nop 0")
    for w in range(8):
        e(f"v_mul_f32 v{L+w}, v{L+w}, v8"); bf16r(f"v{L+w}", f"v{L+w}")
    e("s_waitcnt lgkmcnt(0)")
    O=20
    for d in range(20): e(f"v_mov_b32 v{O+d}, 0")
    for w in range(8):
        for i in range(10):
            e(f"v_lshlrev_b32 v7, 16, v{V+10*w+i}"); e(f"v_fmac_f32 v{O+2*i}, v{L+w}, v7")
            e(f"v_and_b32 v8, 0xffff0000, v{V+10*w+i}"); e(f"v_fmac_f32 v{O+2*i+1}, v{L+w}, v8")
    for i in range(10): e(f"v_cvt_pk_bf16_f32 v{Q+i}, v{O+2*i}, v{O+2*i+1}")
    e("v_lshrrev_b32 v4, 4, v2"); e("v_mul_u32_u24 v4, 69632, v4"); e("v_and_b32 v5, 15, v2"); e("v_lshl_add_u32 v4, v5, 4, v4")
    e("s_mul_i32 s26, s3, 80"); e("s_mul_i32 s27, s24, 20"); e("s_add_u32 s26, s26, s27")
    for p in range(5):
        e("s_lshr_b32 s27, s26, 3"); e("s_lshl_b32 s27, s27, 8"); e("s_bfe_u32 s28, s26, 0x10002"); e("s_lshl_b32 s28, s28, 3"); e("s_add_u32 s27, s27, s28")
        e(f"buffer_store_dwordx2 v[{Q+2*p}:{Q+2*p+1}], v4, s[12:15], s27 offen"+" sc1")
        e("s_add_u32 s26, s26, 4")
    e("s_lshr_b32 s48, s21, 1")
    lab("G1_sync")
    phase2()
    lab("G1_done"); e("s_endpgm")
    kdesc("g1_kernel", 256)

def phase2():
    WB = 20480
    e("s_load_dwordx2 s[16:17], s[0:1], 0")
    e("s_load_dwordx2 s[40:41], s[0:1], 56")
    e("s_and_b32 s3, s2, 7"); e("s_lshr_b32 s20, s2, 3")
    e("s_lshr_b32 s21, s20, 3"); e("s_lshl_b32 s49, s3, 2"); e("s_add_u32 s21, s21, s49")
    e("s_and_b32 s20, s20, 7")
    e("v_lshrrev_b32 v1, 6, v0"); e("v_and_b32 v2, 63, v0")
    e("v_lshlrev_b32 v4, 4, v2")
    srd(52, 18, 19, 4096, CNT_OFF)
    if 'clk' in X: e("s_memtime s[80:81]")
    e("s_waitcnt vmcnt(0)"); e("s_barrier")
    if 'clk' in X: e("s_memtime s[82:83]")
    e("s_cmp_lg_u32 s22, 0"); e("s_cbranch_scc1 G2_noat")
    e("s_lshl_b32 s48, s48, 8"); e("v_mov_b32 v5, 1"); e("v_mov_b32 v6, 0")
    e("s_mov_b64 exec, 1")
    e("buffer_atomic_add v5, v6, s[52:55], s48 offen sc1")
    e("s_mov_b64 exec, -1")
    lab("G2_noat")
    srd(8, 18, 19, AP_SZ, AP_OFF); srd(12, 18, 19, W2_SZ, W2_OFF)
    e("s_mov_b32 s42, s10"); e("s_mov_b32 s43, s14")
    e("s_lshl_b32 s29, s22, 3"); e("s_add_u32 s29, s29, 4"); e("s_mul_i32 s30, s22, 10"); e("s_cmp_lt_u32 s22, 2"); e("s_cselect_b32 s29, s30, s29")
    e("s_cselect_b32 s31, 12, 8"); e("s_cselect_b32 s30, 7, 5")
    e("s_mul_i32 s32, s21, 4*69632"); e("s_lshl_b32 s36, s29, 10"); e("s_add_u32 s32, s32, s36")
    e("s_mul_i32 s33, s20, 68*5120"); e("s_mul_i32 s36, s29, 5120"); e("s_add_u32 s33, s33, s36")
    e("s_add_u32 s44, s32, 69632"); e("s_add_u32 s45, s44, 69632"); e("s_add_u32 s46, s45, 69632")
    e("s_add_u32 s47, s33, 4096")
    e("s_waitcnt lgkmcnt(0)")
    srd(24, 16, 17, X_SZ)
    e("v_and_b32 v11, 15, v2"); e("v_lshrrev_b32 v12, 4, v2")
    e("s_lshl_b32 s36, s21, 6"); e("s_and_b32 s37, s22, 3"); e("s_lshl_b32 s37, s37, 4"); e("s_add_u32 s36, s36, s37")
    e("v_add_u32 v11, s36, v11"); e("v_mul_u32_u24 v11, 1280, v11")
    e("s_lshr_b32 s36, s22, 2"); e("s_mul_i32 s36, s36, 48")
    e("s_mul_i32 s37, s20, 80"); e("s_add_u32 s37, s37, s36"); e("v_lshl_add_u32 v12, v12, 2, s37"); e("v_lshl_add_u32 v11, v12, 1, v11")
    for nb in range(3): e(f"buffer_load_dwordx2 v[{14+2*nb}:{15+2*nb}], v11, s[24:27], 0 offen offset:{32*nb}")
    ACC=32; FR=112
    for i in range(80): e(f"v_mov_b32 v{ACC+i}, 0")
    def ldW(fs):
        b = FR+36*fs
        for q in range(4): e(f"buffer_load_dwordx4 v[{b+16+4*q}:{b+16+4*q+3}], v4, s[12:15], s33 offen offset:{1024*q}")
        e(f"buffer_load_dwordx4 v[{b+32}:{b+35}], v4, s[12:15], s47 offen")
        e("s_add_u32 s33, s33, 5120"); e("s_add_u32 s47, s47, 5120")
    def ldA(fs):
        b = FR+36*fs
        for q in range(4): e(f"buffer_load_dwordx4 v[{b+4*q}:{b+4*q+3}], v4, s[8:11], s{(32,44,45,46)[q]} offen")
        for s_ in (32,44,45,46): e(f"s_add_u32 s{s_}, s{s_}, 1024")
    for fs in range(3): ldW(fs)
    e("s_cmp_lg_u32 s22, 0"); e("s_cbranch_scc1 G2_go")
    e("s_lshl_b32 s48, s3, 8"); e("v_mov_b32 v6, 0"); e("s_mov_b32 s49, 0")
    lab("G2_spin")
    e("buffer_load_dword v5, v6, s[52:55], s48 offen sc1")
    e("s_waitcnt vmcnt(0)")
    e("v_readfirstlane_b32 s50, v5")
    e("s_cmp_ge_u32 s50, 32"); e("s_cbranch_scc1 G2_go")
    e("s_sleep 2")
    e("s_add_u32 s49, s49, 1"); e("s_cmp_lt_u32 s49, 0x4000"); e("s_cbranch_scc1 G2_spin")
    lab("G2_go")
    e("s_barrier")
    if 'clk' in X: e("s_memtime s[84:85]")
    for fs in range(3): ldA(fs)
    e("s_mov_b32 s35, 0")
    def body(cnts):
        for fs in range(4):
            e("s_cmp_lt_i32 s35, s30"); e("s_cselect_b32 s10, s42, 0"); e("s_cselect_b32 s14, s43, 0")
            ldA((fs+3)%4); ldW((fs+3)%4); e("s_add_u32 s35, s35, 1")
            e(f"s_waitcnt vmcnt({cnts[fs]})")
            b = FR+36*fs
            for nb in range(5):
                for mb in range(4):
                    a_ = ACC+(nb*4+mb)*4; w = b+16+nb*4; x = b+mb*4
                    e(f"v_mfma_f32_16x16x32_bf16 v[{a_}:{a_+3}], v[{w}:{w+3}], v[{x}:{x+3}], v[{a_}:{a_+3}]")
    body((17,22,27,27))
    lab("G2_loop")
    body((27,27,27,27))
    e("s_cmp_lt_i32 s35, s31"); e("s_cbranch_scc1 G2_loop")
    e("s_waitcnt vmcnt(0)"); e("s_nop 7")
    if 'clk' in X:
        e("s_memtime s[66:67]"); e("s_waitcnt lgkmcnt(0)")
        e("s_sub_u32 s66, s66, s60"); e("s_sub_u32 s80, s80, s60"); e("s_sub_u32 s82, s82, s60"); e("s_sub_u32 s84, s84, s60")
        srd(72, 64, 65, 256)
        e("v_mov_b32 v120, s80"); e("v_mov_b32 v121, s82"); e("v_mov_b32 v122, s84"); e("v_mov_b32 v123, s66"); e("v_mov_b32 v124, 0")
        e("s_cmp_gt_u32 s22, 3"); e("s_cbranch_scc1 G2_nc")
        e("s_and_b32 s70, s2, 0x7f"); e("s_cmp_lg_u32 s70, 0"); e("s_cbranch_scc1 G2_nc")
        e("s_lshr_b32 s70, s2, 7"); e("s_lshl_b32 s70, s70, 6"); e("s_lshl_b32 s71, s22, 4"); e("s_add_u32 s70, s70, s71")
        e("buffer_store_dwordx4 v[120:123], v124, s[72:75], s70 offen")
        lab("G2_nc")
    e("v_mul_u32_u24 v29, 20480, v1"); e("v_add_u32 v10, v29, v4")
    for i in range(20): e(f"ds_write_b128 v10, v[{ACC+4*i}:{ACC+4*i+3}] offset:{i*1024}")
    srd(12, 40, 41, X_SZ)
    e("s_and_b32 s37, s22, 3"); e("s_lshl_b32 s37, s37, 10"); e("s_lshr_b32 s36, s22, 2"); e("s_mul_i32 s36, s36, 12288"); e("s_add_u32 s37, s37, s36")
    e("v_add_u32 v10, s37, v4"); e(f"v_add_u32 v12, {3*WB}, v10"); e(f"v_add_u32 v13, {6*WB}, v10")
    e("s_waitcnt lgkmcnt(0)"); e("s_barrier")
    def rd(nb):
        r = 32+32*nb
        for k in range(8): e(f"ds_read_b128 v[{r+4*k}:{r+4*k+3}], v{(10,12,13)[k//3]} offset:{nb*4096+(k%3)*WB}")
    def fin(nb):
        r = 32+32*nb
        e(f"v_lshlrev_b32 v6, 16, v{14+2*nb}"); e(f"v_and_b32 v7, 0xffff0000, v{14+2*nb}")
        e(f"v_lshlrev_b32 v8, 16, v{15+2*nb}"); e(f"v_and_b32 v9, 0xffff0000, v{15+2*nb}")
        for j in range(4):
            e(f"v_add_f32 v{r+j}, v{r+j}, v{r+4+j}")
            e(f"v_add_f32 v{r+8+j}, v{r+8+j}, v{r+12+j}"); e(f"v_add_f32 v{r+16+j}, v{r+16+j}, v{r+20+j}"); e(f"v_add_f32 v{r+24+j}, v{r+24+j}, v{r+28+j}")
            e(f"v_add_f32 v{r+8+j}, v{r+8+j}, v{r+16+j}"); e(f"v_add_f32 v{r+8+j}, v{r+8+j}, v{r+24+j}")
            bf16r(f"v{r+8+j}", f"v{r+8+j}"); bf16r(f"v{r+j}", f"v{r+j}")
            e(f"v_add_f32 v{r+j}, v{6+j}, v{r+j}"); bf16r(f"v{r+j}", f"v{r+j}")
            e(f"v_add_f32 v{r+j}, v{r+j}, v{r+8+j}")
        e(f"v_cvt_pk_bf16_f32 v{r}, v{r}, v{r+1}"); e(f"v_cvt_pk_bf16_f32 v{r+1}, v{r+2}, v{r+3}")
        e(f"buffer_store_dwordx2 v[{r}:{r+1}], v11, s[12:15], 0 offen offset:{32*nb}")
    rd(0); rd(1)
    e("s_waitcnt lgkmcnt(8)"); fin(0)
    e("s_cmp_ge_u32 s22, 4"); e("s_cbranch_scc1 G2_two")
    rd(2); e("s_waitcnt lgkmcnt(8)"); fin(1); e("s_waitcnt lgkmcnt(0)"); fin(2); e("s_endpgm")
    lab("G2_two")
    e("s_waitcnt lgkmcnt(0)"); fin(1)

HEAD = open("parallel_sum__sliding_local_dilated__glu_gated_swiglu__prompt.s.ref").read().split("; @launch")[0]
gen_prep(); gen_g1()
txt = HEAD + """; @launch kernel=prep_kernel grid=(408,1,1) block=(256,1,1) lds=36864
; @launch kernel=g1_kernel grid=(256,1,1) block=(512,1,1) lds=163840
.amdgcn_target "amdgcn-amd-amdhsa--gfx950"
.text
""" + "\n".join(OUT) + '\n.section .rodata,"a"\n' + "\n".join(DESCS) + "\n"
open(os.environ.get("GO","k.s"), "w").write(txt)
```

```python
import sys, os
X=os.environ.get("GX","")
OUT = []
def e(s): OUT.append("    " + s)
def lab(s): OUT.append(s + ":")

XP_OFF, WQ_OFF, WF_OFF, W2_OFF, AP_OFF = 0x0, 0x300000, 0x600000, 0xA00000, 0xD00000
XP_SZ, WQ_SZ, WF_SZ, W2_SZ, AP_SZ = 128*20*1024, 8*20*15*1024, 16*20*12*1024, 8*68*5*1024, 128*68*1024
CNT_OFF = AP_OFF + AP_SZ
WS_SZ = CNT_OFF + 4096
X_SZ = 2048*1280

def srd(d, lo, hi, size, add=0):
    if add:
        e(f"s_add_u32 s{d}, s{lo}, {add:#x}")
        e(f"s_addc_u32 s{d+1}, s{hi}, 0")
    else:
        e(f"s_mov_b32 s{d}, s{lo}")
        e(f"s_mov_b32 s{d+1}, s{hi}")
    e(f"s_and_b32 s{d+1}, s{d+1}, 0xffff")
    e(f"s_mov_b32 s{d+2}, {size:#x}")
    e(f"s_mov_b32 s{d+3}, 0x00020000")

def kstart(name):
    OUT.append(f".globl {name}\n.p2align 8\n.type {name},@function\n{name}:")

DESCS = []
def kdesc(name, vgpr, sgpr=100):
    acc = ((vgpr + 3)//4)*4
    DESCS.append(f""".p2align 6
.amdhsa_kernel {name}
  .amdhsa_next_free_vgpr {vgpr}
  .amdhsa_next_free_sgpr {sgpr}
  .amdhsa_accum_offset {acc}
  .amdhsa_group_segment_fixed_size 0
  .amdhsa_kernarg_size 80
  .amdhsa_user_sgpr_count 2
  .amdhsa_user_sgpr_kernarg_segment_ptr 1
  .amdhsa_system_sgpr_workgroup_id_x 1
.end_amdhsa_kernel""")

def bf16r(dst, src):
    e(f"v_cvt_pk_bf16_f32 {dst}, {src}, {src}")
    e(f"v_lshlrev_b32 {dst}, 16, {dst}")

def divc(q, r, src, d, maxv):
    for sh in range(8, 25):
        m = ((1 << sh) + d - 1)//d
        if m >= (1 << 24) or m*(maxv-1) >= (1 << 32): continue
        if all((i*m) >> sh == i//d for i in range(maxv)): break
    else: raise Exception("no magic")
    e(f"v_mul_u32_u24 {q}, {m}, {src}"); e(f"v_lshrrev_b32 {q}, {sh}, {q}")
    if r:
        e(f"v_mul_u32_u24 {r}, {d}, {q}"); e(f"v_sub_u32 {r}, {src}, {r}")

def gen_prep():
    kstart("prep_kernel")
    e("s_cmp_ge_u32 s2, 408"); e("s_cbranch_scc1 P_done")
    e("s_load_dwordx2 s[6:7], s[0:1], 72")
    e("s_cmp_ge_u32 s2, 128"); e("s_cbranch_scc1 P_pack")
    e("s_load_dwordx2 s[4:5], s[0:1], 0")
    e("v_lshrrev_b32 v1, 4, v0")
    e("v_and_b32 v2, 15, v0")
    e("s_lshl_b32 s3, s2, 4")
    e("v_add_u32 v3, s3, v1")
    e("v_mul_u32_u24 v3, 1280, v3"); e("v_lshl_add_u32 v3, v2, 4, v3")
    e("v_mul_u32_u24 v4, 272, v2"); e("v_lshl_add_u32 v4, v1, 4, v4")
    e("v_lshrrev_b32 v5, 6, v0"); e("v_and_b32 v6, 63, v0")
    e("v_lshrrev_b32 v7, 4, v6"); e("v_mul_u32_u24 v79, 20, v5"); e("v_add_u32 v7, v7, v79"); e("v_mul_u32_u24 v7, 272, v7")
    e("v_lshl_add_u32 v7, v2, 4, v7")
    e("v_lshlrev_b32 v6, 4, v6"); e("v_mul_u32_u24 v5, 5120, v5"); e("v_add_u32 v6, v6, v5")
    e("s_mul_i32 s3, s2, 20480")
    e("s_waitcnt lgkmcnt(0)")
    srd(8, 4, 5, X_SZ)
    srd(12, 6, 7, XP_SZ, XP_OFF)
    for j in range(5): e(f"buffer_load_dwordx4 v[{8+4*j}:{11+4*j}], v3, s[8:11], 0 offen offset:{256*j}")
    e("s_cmp_lg_u32 s2, 0"); e("s_cbranch_scc1 P_nz")
    srd(16, 6, 7, 4096, CNT_OFF)
    e("v_lshlrev_b32 v28, 4, v0"); e("v_mov_b32 v29, 0")
    e("buffer_store_dword v29, v28, s[16:19], 0 offen sc1")
    lab("P_nz")
    e("s_waitcnt vmcnt(0)")
    for i in range(20):
        e(f"v_lshlrev_b32 v{32+2*i}, 16, v{8+i}")
        e(f"v_and_b32 v{33+2*i}, 0xffff0000, v{8+i}")
    def rowsum(v):
        for k in (8,4,2,1):
            e("s_nop 1")
            e(f"v_add_f32_dpp {v}, {v}, {v} row_ror:{k} row_mask:0xf bank_mask:0xf")
    e("v_add_f32 v30, v32, v33"); e("v_add_f32 v31, v34, v35")
    for i in range(4,40,2): e(f"v_add_f32 v30, v30, v{32+i}"); e(f"v_add_f32 v31, v31, v{33+i}")
    e("v_add_f32 v30, v30, v31")
    rowsum("v30")
    e("v_mov_b32 v72, 0x3acccccd")
    e("v_mul_f32 v73, v30, v72")
    e("v_mov_b32 v30, 0"); e("v_mov_b32 v31, 0")
    for i in range(0,40,2):
        e(f"v_sub_f32 v74, v{32+i}, v73"); e(f"v_sub_f32 v75, v{33+i}, v73")
        e("v_fmac_f32 v30, v74, v74"); e("v_fmac_f32 v31, v75, v75")
    e("v_add_f32 v30, v30, v31")
    rowsum("v30")
    e("v_mul_f32 v75, v30, v72")
    bf16r("v73", "v73"); bf16r("v75", "v75")
    e("v_add_f32 v75, 0x3727c5ac, v75")
    bf16r("v75", "v75")
    e("v_sqrt_f32 v75, v75"); e("s_nop 0")
    bf16r("v75", "v75")
    e("v_rcp_f32 v76, v75"); e("s_nop 0")
    for i in range(40):
        e(f"v_sub_f32 v{32+i}, v{32+i}, v73")
        bf16r(f"v{32+i}", f"v{32+i}")
        e(f"v_mul_f32 v77, v{32+i}, v76")
        e(f"v_fma_f32 v78, -v77, v75, v{32+i}")
        e(f"v_fma_f32 v{32+i}, v78, v76, v77")
    for i in range(20): e(f"v_cvt_pk_bf16_f32 v{8+i}, v{32+2*i}, v{33+2*i}")
    for j in range(5): e(f"ds_write_b128 v4, v[{8+4*j}:{11+4*j}] offset:{j*16*272}")
    e("s_waitcnt lgkmcnt(0)"); e("s_barrier")
    for j in range(5): e(f"ds_read_b128 v[{8+4*j}:{11+4*j}], v7 offset:{j*4*272}")
    for j in range(5):
        e(f"s_waitcnt lgkmcnt({4-j})")
        e(f"buffer_store_dwordx4 v[{8+4*j}:{11+4*j}], v6, s[12:15], s3 offen offset:{1024*j if j<4 else 0}"+" sc1")
        if j == 3: e("s_add_u32 s3, s3, 4096")
    e("s_endpgm")
    lab("P_pack")
    e("s_sub_u32 s3, s2, 128")
    e("s_mov_b32 s40, 0x05040100"); e("s_mov_b32 s41, 0x07060302")
    e("s_cmp_ge_u32 s3, 195"); e("s_cbranch_scc1 P_w2o")
    e("s_cmp_ge_u32 s3, 75"); e("s_cbranch_scc1 P_w13")
    e("s_load_dwordx2 s[4:5], s[0:1], 8")
    e("s_lshl_b32 s3, s3, 2"); e("v_lshrrev_b32 v1, 6, v0"); e("v_add_u32 v1, s3, v1")
    divc("v2", "v3", "v1", 15, 300)
    e("v_bfe_u32 v8, v0, 4, 2"); e("v_lshl_add_u32 v2, v2, 2, v8"); e("v_and_b32 v8, 15, v0"); e("v_lshl_add_u32 v3, v3, 4, v8")
    divc("v4", "v5", "v3", 80, 240)
    divc("v6", "v7", "v5", 10, 80)
    e("v_mul_u32_u24 v4, 5, v4"); e("v_lshrrev_b32 v8, 1, v7"); e("v_add_u32 v4, v4, v8")
    e("v_lshrrev_b32 v8, 2, v2"); e("v_mul_u32_u24 v6, 20, v6"); e("v_add_u32 v6, v6, v8")
    e("v_mul_u32_u24 v6, 15, v6"); e("v_add_u32 v6, v6, v4")
    e(f"s_mov_b32 s20, {WQ_OFF}"); e("s_mov_b32 s21, 3840"); e(f"s_mov_b32 s22, {640*3840}")
    e("v_mul_u32_u24 v10, 8*3840, v2"); e("v_lshl_add_u32 v10, v3, 4, v10"); e("v_add_u32 v11, 4*3840, v10")
    e("s_branch P_go")
    lab("P_w13")
    e("s_sub_u32 s3, s3, 75"); e("s_cmp_ge_u32 s3, 60"); e("s_cselect_b32 s23, 3, 0"); e("s_cselect_b32 s24, 40, 32"); e("s_cselect_b32 s25, 60, 0")
    e("s_sub_u32 s3, s3, s25")
    e("s_load_dwordx2 s[4:5], s[0:1], s24")
    e("s_lshl_b32 s3, s3, 2"); e("v_lshrrev_b32 v1, 6, v0"); e("v_add_u32 v1, s3, v1")
    divc("v2", "v3", "v1", 12, 240)
    e("v_bfe_u32 v8, v0, 4, 2"); e("v_lshl_add_u32 v2, v2, 2, v8"); e("v_and_b32 v8, 15, v0"); e("v_lshl_add_u32 v3, v3, 4, v8")
    divc("v6", "v5", "v3", 12, 192)
    divc("v4", "v7", "v5", 6, 12)
    e("v_mul_u32_u24 v4, 6, v4"); e("v_lshrrev_b32 v8, 1, v7"); e("v_add_u32 v4, v4, v8"); e("v_add_u32 v4, s23, v4")
    e("v_lshrrev_b32 v8, 2, v2"); e("v_mul_u32_u24 v6, 20, v6"); e("v_add_u32 v6, v6, v8")
    e("v_mul_u32_u24 v6, 12, v6"); e("v_add_u32 v6, v6, v4")
    e(f"s_mov_b32 s20, {WF_OFF}"); e("s_mov_b32 s21, 3072"); e(f"s_mov_b32 s22, {640*3072}")
    e("v_mul_u32_u24 v10, 8*3072, v2"); e("v_lshl_add_u32 v10, v3, 4, v10"); e("v_add_u32 v11, 4*3072, v10")
    e("s_branch P_go")
    lab("P_w2o")
    e("s_sub_u32 s3, s3, 195"); e("s_cmp_ge_u32 s3, 25"); e("s_cselect_b32 s24, 48, 16"); e("s_cselect_b32 s25, 25, 0"); e("s_cselect_b32 s26, 1, 0")
    e("s_sub_u32 s3, s3, s25")
    e("s_load_dwordx2 s[4:5], s[0:1], s24")
    e("s_lshl_b32 s3, s3, 2"); e("v_lshrrev_b32 v1, 6, v0"); e("v_add_u32 v1, s3, v1")
    divc("v2", "v3", "v1", 5, 240)
    e("v_bfe_u32 v8, v0, 4, 2"); e("v_lshl_add_u32 v2, v2, 2, v8"); e("v_and_b32 v8, 15, v0"); e("v_lshl_add_u32 v3, v3, 4, v8")
    divc("v6", "v7", "v3", 10, 80)
    e("v_lshrrev_b32 v4, 1, v7")
    e("v_lshrrev_b32 v8, 2, v2")
    e("s_mul_i32 s27, s26, 20")
    e("v_mul_u32_u24 v6, 68, v6"); e("v_add_u32 v6, v6, v8"); e("v_add_u32 v6, s27, v6")
    e("v_mul_u32_u24 v6, 5, v6"); e("v_add_u32 v6, v6, v4")
    e(f"s_mov_b32 s20, {W2_OFF}"); e("s_mov_b32 s21, 1280"); e(f"s_mov_b32 s22, {640*1280}")
    e("s_cmp_eq_u32 s26, 0"); e("s_cbranch_scc1 P_wo")
    e(f"s_mov_b32 s22, {1536*1280}")
    divc("v12", "v13", "v8", 3, 48)
    e("v_and_b32 v14, 3, v2")
    e("v_mul_u32_u24 v12, 96, v12"); e("v_lshl_add_u32 v12, v14, 2, v12")
    e("v_cmp_eq_u32 vcc, 1, v13"); e("v_mov_b32 v15, 48"); e("v_cndmask_b32 v14, 0, v15, vcc")
    e("v_cmp_eq_u32 vcc, 2, v13"); e("v_mov_b32 v16, 32"); e("v_cndmask_b32 v14, v14, v16, vcc")
    e("v_mov_b32 v16, 16"); e("v_cndmask_b32 v15, v16, v15, vcc")
    e("v_add_u32 v12, v12, v14")
    e("v_add_u32 v13, v12, v15")
    e("v_mul_u32_u24 v10, 1280, v12"); e("v_lshl_add_u32 v10, v3, 4, v10")
    e("v_mul_u32_u24 v11, 1280, v13"); e("v_lshl_add_u32 v11, v3, 4, v11")
    e("s_branch P_go")
    lab("P_wo")
    e("v_mul_u32_u24 v10, 8*1280, v2"); e("v_lshl_add_u32 v10, v3, 4, v10"); e("v_add_u32 v11, 4*1280, v10")
    lab("P_go")
    e("v_lshlrev_b32 v6, 10, v6"); e("v_and_b32 v8, 3, v2"); e("v_lshl_add_u32 v6, v8, 8, v6")
    e("v_and_b32 v8, 1, v7"); e("v_lshl_add_u32 v6, v8, 7, v6"); e("v_add_u32 v6, s20, v6")
    e("s_lshl_b32 s24, s21, 1"); e("s_add_u32 s25, s24, s21")
    e("s_waitcnt lgkmcnt(0)")
    e("s_mov_b32 s8, s4"); e("s_and_b32 s9, s5, 0xffff"); e("s_mov_b32 s10, s22"); e("s_mov_b32 s11, 0x00020000")
    srd(12, 6, 7, WS_SZ)
    for i in range(8):
        so = ("0","s21","s24","s25")[i&3]
        e(f"buffer_load_dwordx4 v[{16+4*i}:{19+4*i}], v{10+(i>>2)}, s[8:11], {so} offen")
    e("s_waitcnt vmcnt(0)")
    for c_ in range(8):
        for q in range(4):
            e(f"v_perm_b32 v{48+4*c_+q}, v{16+4*(2*q+1)+(c_>>1)}, v{16+4*(2*q)+(c_>>1)}, s{40+(c_&1)}")
    e("v_lshrrev_b32 v1, 6, v0"); e("v_mul_u32_u24 v1, 9216, v1")
    e("v_bfe_u32 v2, v0, 1, 3"); e("v_bfe_u32 v3, v0, 4, 2"); e("v_and_b32 v4, 1, v0")
    e("v_lshlrev_b32 v2, 3, v2"); e("v_lshl_add_u32 v2, v3, 1, v2"); e("v_add_u32 v2, v2, v4")
    e("v_mul_u32_u24 v2, 144, v2"); e("v_add_u32 v2, v2, v1")
    for c_ in range(8): e(f"ds_write_b128 v2, v[{48+4*c_}:{51+4*c_}] offset:{16*c_}")
    e("v_bfe_u32 v3, v0, 3, 3"); e("v_mul_u32_u24 v3, 144, v3"); e("v_and_b32 v4, 7, v0"); e("v_lshl_add_u32 v3, v4, 4, v3"); e("v_add_u32 v3, v3, v1")
    e("v_and_b32 v4, 63, v0"); e("v_lshlrev_b32 v4, 4, v4")
    for i in range(8): e(f"v_readlane_b32 s{48+i}, v6, {2*i}")
    e("s_waitcnt lgkmcnt(0)")
    for i in range(8): e(f"ds_read_b128 v[{16+4*i}:{19+4*i}], v3 offset:{1152*i}")
    for i in range(8):
        e(f"s_waitcnt lgkmcnt({7-i})")
        e(f"buffer_store_dwordx4 v[{16+4*i}:{19+4*i}], v4, s[12:15], s{48+i} offen"+" sc1")
    lab("P_done"); e("s_endpgm")
    kdesc("prep_kernel", 80)

STG = 28672; NB = 5; NT = 20
def gen_g1():
    kstart("g1_kernel")
    e("s_cmp_ge_u32 s2, 256"); e("s_cbranch_scc1 G1_done")
    if 'few' in X: e("s_and_b32 s3, s2, 0x78"); e("s_cmp_lg_u32 s3, 0"); e("s_cbranch_scc1 G1_done")
    if 'clk' in X: e("s_memtime s[60:61]"); e("s_load_dwordx2 s[64:65], s[0:1], 64")
    e("s_load_dwordx2 s[18:19], s[0:1], 72")
    e("s_and_b32 s3, s2, 7"); e("s_lshr_b32 s20, s2, 3")
    e("v_lshrrev_b32 v1, 6, v0"); e("v_and_b32 v2, 63, v0"); e("s_nop 0")
    e("v_readfirstlane_b32 s22, v1")
    e("v_lshlrev_b32 v4, 4, v2")
    e("s_waitcnt lgkmcnt(0)")
    srd(8, 18, 19, XP_SZ, XP_OFF)
    e("s_mov_b32 s38, s10")
    e("s_mov_b32 s35, -4"); e("s_mov_b32 s36, 0"); e("s_mov_b32 s37, 0")
    e("s_cmp_ge_u32 s20, 16"); e("s_cbranch_scc1 G1_qkv")
    cnt=[0]
    srd(12, 18, 19, WF_SZ, WF_OFF)
    e("s_mov_b32 s39, s14")
    e("s_lshl_b32 s24, s3, 1"); e("s_and_b32 s25, s20, 1"); e("s_add_u32 s24, s24, s25")
    e("s_lshr_b32 s21, s20, 1")
    e("s_lshl_b32 s25, s21, 4"); e("s_add_u32 s25, s25, s22"); e("s_mul_i32 s32, s25, 20480")
    e("s_mul_i32 s33, s24, 245760"); e("s_lshl_b32 s25, s22, 10"); e("s_add_u32 s33, s33, s25")
    e("s_lshl_b32 s30, s22, 10")
    e("s_mov_b32 s44, s12"); e("s_mov_b32 s45, s13"); e("s_mov_b32 s47, s15")
    e("s_cmp_lt_u32 s22, 4"); e("s_cselect_b32 s43, s39, 0"); e("s_cselect_b32 s42, 1, 0")
    e("s_lshl_b32 s25, s22, 10"); e(f"s_add_u32 s25, s25, {NB*STG}"); e("s_add_u32 s26, s30, 24576"); e("s_cmp_lt_u32 s22, 4"); e("s_cselect_b32 s29, s26, s25")
    def dmaF():
        return ["s_cmp_lt_i32 s35, 16", "s_cselect_b32 s10, s38, 0", "s_cselect_b32 s14, s39, 0", "s_cselect_b32 s46, s43, 0",
          "s_add_u32 s40, s30, s36", "s_mov_b32 m0, s40", "s_add_u32 s40, s40, 8192", f"s_add_u32 s41, s32, {8*20480}",
          "buffer_load_dwordx4 v4, s[8:11], s32 offen lds",
          "s_mov_b32 m0, s40", "s_add_u32 s40, s40, 8192",
          "buffer_load_dwordx4 v4, s[8:11], s41 offen lds",
          "s_mov_b32 m0, s40", "s_mul_i32 s40, s36, s42", "s_add_u32 s41, s33, 8192",
          "buffer_load_dwordx4 v4, s[12:15], s33 offen lds",
          "s_add_u32 s40, s40, s29", "s_mov_b32 m0, s40", "s_add_u32 s32, s32, 1024",
          "buffer_load_dwordx4 v4, s[44:47], s41 offen lds",
          "s_add_u32 s33, s33, 12288",
          f"s_add_u32 s36, s36, {STG}", f"s_cmp_eq_u32 s36, {NB*STG}", "s_cselect_b32 s36, 0, s36"]
    def waitF(k): e(f"s_waitcnt vmcnt({4*k})")
    e("v_and_b32 v10, 3, v1"); e("v_lshl_add_u32 v18, v10, 12, v4")
    e("v_lshrrev_b32 v10, 2, v1"); e("v_mul_u32_u24 v10, 6144, v10"); e("v_add_u32 v19, v10, v4"); e("v_add_u32 v19, 16384, v19")
    def addrs():
        e("v_add_u32 v22, s37, v18"); e("v_add_u32 v23, s37, v19"); e("v_add_u32 v24, s37, v4")
        e(f"s_add_u32 s37, s37, {STG}"); e(f"s_cmp_eq_u32 s37, {NB*STG}"); e("s_cselect_b32 s37, 0, s37")
    ACC = 32
    def mainloop(tag, dma, wait, Ard, Wrd, pairs, FR):
        na, nw = len(Ard), len(Wrd); fsz = 4*(na+nw)
        def reads(fs):
            L=[]
            b = FR + fsz*fs
            for i,(v,o) in enumerate(Ard): L.append(f"ds_read_b128 v[{b+4*i}:{b+4*i+3}], {v} offset:{o}")
            for i,(v,o) in enumerate(Wrd): L.append(f"ds_read_b128 v[{b+4*na+4*i}:{b+4*na+4*i+3}], {v} offset:{o}")
            return L
        for i in range(4*len(pairs)): e(f"v_mov_b32 v{ACC+i}, 0")
        lab(f"{tag}_pro")
        for d in dma(): e(d)
        e("s_add_u32 s35, s35, 1"); e("s_cmp_lt_i32 s35, 0"); e(f"s_cbranch_scc1 {tag}_pro")
        wait(3); addrs(); e("s_barrier")
        for r in reads(0): e(r)
        if 'clk' in X: e("s_memtime s[80:81]")
        lab(f"{tag}_loop")
        DPM = int(os.environ.get("DPM","1"))
        for fs in range(2):
            wait(2); addrs(); e("s_waitcnt lgkmcnt(0)"); e("s_barrier")
            Dq = dma(); R = reads(1-fs)
            b = FR + fsz*fs
            n = len(pairs)
            for p,(ai,wi) in enumerate(pairs):
                a_ = ACC+4*p; w = b+4*na+4*wi; x = b+4*ai
                e(f"v_mfma_f32_16x16x32_bf16 v[{a_}:{a_+3}], v[{w}:{w+3}], v[{x}:{x+3}], v[{a_}:{a_+3}]")
                if R: e(R.pop(0))
                for _ in range(DPM):
                    if Dq: e(Dq.pop(0))
            for r in R: e(r)
            for d in Dq: e(d)
            e("s_add_u32 s35, s35, 1")
        e(f"s_cmp_lt_i32 s35, {NT}"); e(f"s_cbranch_scc1 {tag}_loop")
        e("s_waitcnt lgkmcnt(0)")
        if 'clk' in X: e("s_memtime s[82:83]")
        e("s_waitcnt vmcnt(0)")
    def clkfin():
        if 'clk' not in X: return
        e("s_waitcnt vmcnt(0)")
        e("s_memtime s[66:67]"); e("s_waitcnt lgkmcnt(0)")
        e("s_sub_u32 s66, s66, s60"); e("s_sub_u32 s80, s80, s60"); e("s_sub_u32 s82, s82, s60"); e("s_sub_u32 s84, s84, s60")
        srd(72, 64, 65, 256)
        e("v_mov_b32 v60, s80"); e("v_mov_b32 v61, s82"); e("v_mov_b32 v62, s84"); e("v_mov_b32 v63, s66"); e("v_mov_b32 v64, 0")
        cnt[0]+=1
        e("s_cmp_gt_u32 s22, 3"); e("s_cbranch_scc1 G1_done")
        e("s_and_b32 s70, s2, 0x7f"); e("s_cmp_lg_u32 s70, 0"); e("s_cbranch_scc1 G1_done")
        e("s_lshr_b32 s70, s2, 7"); e("s_lshl_b32 s70, s70, 6"); e("s_lshl_b32 s71, s22, 4"); e("s_add_u32 s70, s70, s71")
        e("buffer_store_dwordx4 v[60:63], v64, s[72:75], s70 offen")
    pairsF = [(mb, nb) for nb in range(6) for mb in range(4)]
    mainloop("G1F", dmaF, waitF, [("v22", 1024*i) for i in range(4)], [("v23", 1024*i) for i in range(6)], pairsF, 128)
    if os.environ.get("EARLYW","1")=="1":
        e("s_barrier"); p2_wdma(); e("s_mov_b32 s62, 1")
    else: e("s_mov_b32 s62, 0")
    srd(8, 18, 19, AP_SZ, AP_OFF)
    e("s_lshl_b32 s25, s21, 4"); e("s_and_b32 s26, s22, 3"); e("s_lshl_b32 s26, s26, 2"); e("s_add_u32 s25, s25, s26")
    e("s_mul_i32 s25, s25, 69632")
    e("s_mul_i32 s26, s24, 3072"); e("s_add_u32 s25, s25, s26"); e("s_add_u32 s25, s25, 20480")
    e("s_lshr_b32 s26, s22, 2")
    e("s_lshl_b32 s27, s26, 10"); e("s_add_u32 s27, s27, s25")
    e("s_lshl_b32 s28, s26, 3"); e("s_add_u32 s28, s28, s25"); e("s_add_u32 s28, s28, 2048")
    e("s_mov_b32 s36, 0xbfb8aa3b")
    e("s_nop 4")
    T = 128
    for mb in range(4):
        idx = []
        for b in range(3):
            for j in range(4): idx.append((ACC+(b*4+mb)*4+j, ACC+((b+3)*4+mb)*4+j))
        for k,(g,u) in enumerate(idx): bf16r(f"v{g}", f"v{g}")
        for k,(g,u) in enumerate(idx): e(f"v_mul_f32 v{T+k}, s36, v{g}")
        for k in range(12): e(f"v_exp_f32 v{T+k}, v{T+k}")
        for k,(g,u) in enumerate(idx): bf16r(f"v{u}", f"v{u}")
        for k in range(12): e(f"v_add_f32 v{T+k}, 1.0, v{T+k}")
        for k in range(12): e(f"v_rcp_f32 v{T+k}, v{T+k}")
        e("s_nop 0")
        for k,(g,u) in enumerate(idx): e(f"v_mul_f32 v{T+k}, v{g}, v{T+k}")
        for k in range(12): bf16r(f"v{T+k}", f"v{T+k}")
        for k,(g,u) in enumerate(idx): e(f"v_mul_f32 v{T+k}, v{T+k}, v{u}")
        O = 144+8*mb
        for k in range(6): e(f"v_cvt_pk_bf16_f32 v{O+k}, v{T+2*k}, v{T+2*k+1}")
        e(f"buffer_store_dwordx4 v[{O}:{O+3}], v4, s[8:11], s27 offen"+" sc1")
        e(f"buffer_store_dwordx2 v[{O+4}:{O+5}], v4, s[8:11], s28 offen"+" sc1")
        if mb < 3: e("s_add_u32 s27, s27, 69632"); e("s_add_u32 s28, s28, 69632")
    e("s_mov_b32 s48, s21")
    e("s_branch G1_sync")
    lab("G1_qkv")
    e("s_mov_b32 s62, 0")
    srd(12, 18, 19, WQ_SZ, WQ_OFF)
    e("s_mov_b32 s39, s14")
    e("s_sub_u32 s21, s20, 16")
    e("s_lshl_b32 s25, s21, 3"); e("s_add_u32 s25, s25, s22"); e("s_sub_u32 s25, s25, 1"); e("s_max_i32 s25, s25, 0")
    e("s_mul_i32 s32, s25, 20480")
    e("s_mul_i32 s33, s3, 307200"); e("s_lshl_b32 s25, s22, 10"); e("s_add_u32 s33, s33, s25")
    e("s_lshl_b32 s25, s21, 3"); e("s_add_u32 s25, s25, 7"); e("s_mul_i32 s25, s25, 20480")
    e("s_add_u32 s26, s33, 7168")
    e("s_mov_b32 s42, 15360"); e("s_cmp_eq_u32 s22, 0"); e("s_cselect_b32 s34, s25, s26"); e("s_cselect_b32 s42, 1024, s42")
    e("s_cselect_b32 s44, s8, s12"); e("s_cselect_b32 s45, s9, s13"); e("s_cselect_b32 s43, s38, s39"); e("s_mov_b32 s47, 0x00020000")
    e("s_lshl_b32 s30, s22, 10")
    e("s_add_u32 s31, s30, 9216")
    e("s_add_u32 s25, s31, 7168"); e("s_cmp_eq_u32 s22, 0"); e("s_cselect_b32 s29, 8192, s25")
    def dmaQ():
        return ["s_cmp_lt_i32 s35, 16", "s_cselect_b32 s10, s38, 0", "s_cselect_b32 s14, s39, 0", "s_cselect_b32 s46, s43, 0",
          "s_add_u32 s40, s30, s36", "s_mov_b32 m0, s40", "s_add_u32 s40, s31, s36",
          "buffer_load_dwordx4 v4, s[8:11], s32 offen lds",
          "s_mov_b32 m0, s40", "s_add_u32 s40, s29, s36",
          "buffer_load_dwordx4 v4, s[12:15], s33 offen lds",
          "s_mov_b32 m0, s40", "s_add_u32 s32, s32, 1024",
          "buffer_load_dwordx4 v4, s[44:47], s34 offen lds",
          "s_add_u32 s33, s33, 15360", "s_add_u32 s34, s34, s42",
          f"s_add_u32 s36, s36, {STG}", f"s_cmp_eq_u32 s36, {NB*STG}", "s_cselect_b32 s36, 0, s36"]
    def waitQ(k): e(f"s_waitcnt vmcnt({3*k})")
    e("v_lshrrev_b32 v10, 1, v1"); e("v_lshlrev_b32 v10, 11, v10"); e("v_add_u32 v18, v10, v4"); e("v_add_u32 v18, 1024, v18")
    e("v_and_b32 v10, 1, v1"); e("v_lshlrev_b32 v10, 13, v10"); e("v_add_u32 v19, v10, v4"); e("v_add_u32 v19, 9216, v19")
    e("s_cmp_eq_u32 s22, 1"); e("s_cbranch_scc1 G1_v2")
    e("s_cmp_eq_u32 s22, 2"); e("s_cbranch_scc1 G1_v3")
    e("s_and_b32 s25, s22, 1"); e("s_cmp_eq_u32 s25, 1"); e("s_cbranch_scc1 G1_v1")
    def qepi(nw, halo):
        e("s_barrier")
        e("v_and_b32 v10, 15, v2"); e("v_mul_u32_u24 v10, 520, v10"); e("v_lshrrev_b32 v11, 4, v2"); e("v_lshl_add_u32 v12, v11, 3, v10")
        e("v_and_b32 v11, 1, v1"); e("v_lshl_add_u32 v12, v11, 8, v12")
        e("v_lshrrev_b32 v11, 1, v1"); e("v_mul_u32_u24 v11, 16640, v11"); e("v_add_u32 v10, v12, v11"); e("v_add_u32 v10, 8320, v10")
        p = 0
        for wi in range(nw):
            for mb in range(2):
                g = ACC+4*p; p += 1
                e(f"v_cvt_pk_bf16_f32 v{g}, v{g}, v{g+1}"); e(f"v_cvt_pk_bf16_f32 v{g+1}, v{g+2}, v{g+3}")
                e(f"ds_write_b64 v10, v[{g}:{g+1}] offset:{mb*8320+wi*32}")
        for wi in halo:
            g = ACC+4*p; p += 1
            e(f"v_cvt_pk_bf16_f32 v{g}, v{g}, v{g+1}"); e(f"v_cvt_pk_bf16_f32 v{g+1}, v{g+2}, v{g+3}")
            e(f"ds_write_b64 v12, v[{g}:{g+1}] offset:{wi*32}")
        e("s_branch G1_att")
    A2 = [("v22", 0), ("v22", 1024)]
    def W(n): return [("v23", 1024*i) for i in range(n)]
    mainloop("G1Q0", dmaQ, waitQ, A2, W(8), [(mb,wi) for wi in range(8) for mb in range(2)], 128); qepi(8, [])
    lab("G1_v1")
    mainloop("G1Q1", dmaQ, waitQ, A2, W(7), [(mb,wi) for wi in range(7) for mb in range(2)], 128); qepi(7, [])
    lab("G1_v2")
    mainloop("G1Q2", dmaQ, waitQ, A2+[("v24",0)], W(7), [(mb,wi) for wi in range(7) for mb in range(2)]+[(2,wi) for wi in range(7)], 128); qepi(7, list(range(7)))
    lab("G1_v3")
    mainloop("G1Q3", dmaQ, waitQ, A2+[("v24",0)], W(8), [(mb,wi) for wi in range(8) for mb in range(2)]+[(2,wi) for wi in (5,6,7)], 128); qepi(8, [5,6,7])
    lab("G1_att")
    srd(12, 18, 19, AP_SZ, AP_OFF)
    e("s_and_b32 s24, s22, 3"); e("s_lshr_b32 s25, s22, 2")
    e("s_lshl_b32 s26, s25, 6"); e("v_add_u32 v3, s26, v2")
    e("s_lshl_b32 s27, s21, 7"); e("v_add_u32 v2, s27, v3")
    e("s_mul_i32 s26, s24, 40"); e("s_add_u32 s26, s26, 16*520")
    e("v_mul_u32_u24 v4, 520, v3"); e("v_add_u32 v4, s26, v4")
    e("v_subrev_u32 v5, 4160, v4")
    e("s_waitcnt lgkmcnt(0)"); e("s_barrier")
    if 'clk' in X: e("s_memtime s[84:85]")
    Q=10; K=20; L=100; V=140
    for i in range(5): e(f"ds_read_b64 v[{Q+2*i}:{Q+2*i+1}], v4 offset:{8*i}")
    def rowaddr(w):
        if w == 0: return "v4", 0
        if w <= 4: return "v5", 4160-1040*w
        return "v6", 8320-1040*w
    e("v_subrev_u32 v6, 8320, v4")
    for w in range(8):
        a,o = rowaddr(w)
        for i in range(5): e(f"ds_read_b64 v[{K+10*w+2*i}:{K+10*w+2*i+1}], {a} offset:{o+160+8*i}")
    e("s_mov_b32 s20, 0x3e64f92e"); e("s_mov_b32 s23, 0xce6e0000")
    for w in range(8): e(f"v_mov_b32 v{L+w}, 0")
    e("s_waitcnt lgkmcnt(0)")
    for w in range(8):
        a,o = rowaddr(w)
        for i in range(5): e(f"ds_read_b64 v[{V+10*w+2*i}:{V+10*w+2*i+1}], {a} offset:{o+320+8*i}")
    for i in range(10):
        for w in range(8): e(f"v_dot2_f32_bf16 v{L+w}, v{Q+i}, v{K+10*w+i}, v{L+w}")
    e("v_mov_b32 v7, s23")
    e("s_nop 1")
    for w in range(8):
        bf16r(f"v{L+w}", f"v{L+w}"); e(f"v_mul_f32 v{L+w}, s20, v{L+w}"); bf16r(f"v{L+w}", f"v{L+w}")
        if w:
            e(f"v_cmp_le_u32 vcc, {2*w}, v2"); e("s_nop 1")
            e(f"v_cndmask_b32 v{L+w}, v7, v{L+w}, vcc")
    e(f"v_max_f32 v7, v{L}, v{L+1}")
    for w in range(2,8): e(f"v_max_f32 v7, v7, v{L+w}")
    e("s_mov_b32 s23, 0x3fb8aa3b")
    e("v_mov_b32 v8, 0")
    for w in range(8):
        e(f"v_sub_f32 v{L+w}, v{L+w}, v7"); e(f"v_mul_f32 v{L+w}, s23, v{L+w}"); e(f"v_exp_f32 v{L+w}, v{L+w}")
    for w in range(8): e(f"v_add_f32 v8, v8, v{L+w}")
    e("v_rcp_f32 v8, v8"); e("s_nop 0")
    for w in range(8):
        e(f"v_mul_f32 v{L+w}, v{L+w}, v8"); bf16r(f"v{L+w}", f"v{L+w}")
    e("s_waitcnt lgkmcnt(0)")
    O=20
    for d in range(20): e(f"v_mov_b32 v{O+d}, 0")
    for w in range(8):
        for i in range(10):
            e(f"v_lshlrev_b32 v7, 16, v{V+10*w+i}"); e(f"v_fmac_f32 v{O+2*i}, v{L+w}, v7")
            e(f"v_and_b32 v8, 0xffff0000, v{V+10*w+i}"); e(f"v_fmac_f32 v{O+2*i+1}, v{L+w}, v8")
    for i in range(10): e(f"v_cvt_pk_bf16_f32 v{Q+i}, v{O+2*i}, v{O+2*i+1}")
    e("v_lshrrev_b32 v4, 4, v2"); e("v_mul_u32_u24 v4, 69632, v4"); e("v_and_b32 v5, 15, v2"); e("v_lshl_add_u32 v4, v5, 4, v4")
    e("s_mul_i32 s26, s3, 80"); e("s_mul_i32 s27, s24, 20"); e("s_add_u32 s26, s26, s27")
    for p in range(5):
        e("s_lshr_b32 s27, s26, 3"); e("s_lshl_b32 s27, s27, 8"); e("s_bfe_u32 s28, s26, 0x10002"); e("s_lshl_b32 s28, s28, 3"); e("s_add_u32 s27, s27, s28")
        e(f"buffer_store_dwordx2 v[{Q+2*p}:{Q+2*p+1}], v4, s[12:15], s27 offen"+" sc1")
        e("s_add_u32 s26, s26, 4")
    e("s_lshr_b32 s48, s21, 1")
    lab("G1_sync")
    phase2()
    lab("G1_done"); e("s_endpgm")
    kdesc("g1_kernel", 256)

def p2_wdma():
    srd(56, 18, 19, W2_SZ, W2_OFF)
    e("s_lshr_b32 s60, s2, 3"); e("s_and_b32 s60, s60, 7")
    e("s_lshl_b32 s61, s22, 3"); e("s_add_u32 s61, s61, 4"); e("s_mul_i32 s63, s22, 10"); e("s_cmp_lt_u32 s22, 2"); e("s_cselect_b32 s61, s63, s61")
    e("s_add_u32 s61, s61, 3")
    e("s_mul_i32 s60, s60, 68*5120"); e("s_mul_i32 s61, s61, 5120"); e("s_add_u32 s60, s60, s61")
    e("s_mul_i32 s61, s22, 20480")
    for st in range(4):
        for q in range(5):
            e("s_mov_b32 m0, s61"); e("s_add_u32 s61, s61, 1024")
            e(f"buffer_load_dwordx4 v4, s[56:59], s60 offen lds")
            e("s_add_u32 s60, s60, 1024")
def phase2():
    WB = 20480
    e("s_load_dwordx2 s[16:17], s[0:1], 0")
    e("s_load_dwordx2 s[40:41], s[0:1], 56")
    e("s_and_b32 s3, s2, 7"); e("s_lshr_b32 s20, s2, 3")
    e("s_lshr_b32 s21, s20, 3"); e("s_lshl_b32 s49, s3, 2"); e("s_add_u32 s21, s21, s49")
    e("s_and_b32 s20, s20, 7")
    e("v_lshrrev_b32 v1, 6, v0"); e("v_and_b32 v2, 63, v0")
    e("v_lshlrev_b32 v4, 4, v2")
    srd(52, 18, 19, 4096, CNT_OFF)
    if 'clk' in X: e("s_memtime s[80:81]")
    e("s_waitcnt vmcnt(0)"); e("s_barrier")
    if 'clk' in X: e("s_memtime s[82:83]")
    e("s_cmp_lg_u32 s22, 0"); e("s_cbranch_scc1 G2_noat")
    e("s_lshl_b32 s48, s48, 8"); e("v_mov_b32 v5, 1"); e("v_mov_b32 v6, 0")
    e("s_mov_b64 exec, 1")
    e("buffer_atomic_add v5, v6, s[52:55], s48 offen sc1")
    e("s_mov_b64 exec, -1")
    lab("G2_noat")
    srd(8, 18, 19, AP_SZ, AP_OFF); srd(12, 18, 19, W2_SZ, W2_OFF)
    e("s_mov_b32 s42, s10"); e("s_mov_b32 s43, s14")
    e("s_lshl_b32 s29, s22, 3"); e("s_add_u32 s29, s29, 4"); e("s_mul_i32 s30, s22, 10"); e("s_cmp_lt_u32 s22, 2"); e("s_cselect_b32 s29, s30, s29")
    e("s_cselect_b32 s31, 12, 8"); e("s_cselect_b32 s30, 7, 5")
    e("s_mul_i32 s32, s21, 4*69632"); e("s_lshl_b32 s36, s29, 10"); e("s_add_u32 s32, s32, s36")
    e("s_mul_i32 s33, s20, 68*5120"); e("s_mul_i32 s36, s29, 5120"); e("s_add_u32 s33, s33, s36")
    e("s_add_u32 s44, s32, 69632"); e("s_add_u32 s45, s44, 69632"); e("s_add_u32 s46, s45, 69632")
    e("s_add_u32 s47, s33, 4096")
    e("s_waitcnt lgkmcnt(0)")
    srd(24, 16, 17, X_SZ)
    e("v_and_b32 v11, 15, v2"); e("v_lshrrev_b32 v12, 4, v2")
    e("s_lshl_b32 s36, s21, 6"); e("s_and_b32 s37, s22, 3"); e("s_lshl_b32 s37, s37, 4"); e("s_add_u32 s36, s36, s37")
    e("v_add_u32 v11, s36, v11"); e("v_mul_u32_u24 v11, 1280, v11")
    e("s_lshr_b32 s36, s22, 2"); e("s_mul_i32 s36, s36, 48")
    e("s_mul_i32 s37, s20, 80"); e("s_add_u32 s37, s37, s36"); e("v_lshl_add_u32 v12, v12, 2, s37"); e("v_lshl_add_u32 v11, v12, 1, v11")
    for nb in range(3): e(f"buffer_load_dwordx2 v[{14+2*nb}:{15+2*nb}], v11, s[24:27], 0 offen offset:{32*nb}")
    ACC=32; FR=112
    for i in range(80): e(f"v_mov_b32 v{ACC+i}, 0")
    def ldW(fs):
        b = FR+36*fs
        for q in range(4): e(f"buffer_load_dwordx4 v[{b+16+4*q}:{b+16+4*q+3}], v4, s[12:15], s33 offen offset:{1024*q}")
        e(f"buffer_load_dwordx4 v[{b+32}:{b+35}], v4, s[12:15], s47 offen")
        e("s_add_u32 s33, s33, 5120"); e("s_add_u32 s47, s47, 5120")
    def ldA(fs):
        b = FR+36*fs
        for q in range(4): e(f"buffer_load_dwordx4 v[{b+4*q}:{b+4*q+3}], v4, s[8:11], s{(32,44,45,46)[q]} offen")
        for s_ in (32,44,45,46): e(f"s_add_u32 s{s_}, s{s_}, 1024")
    for fs in range(3): ldW(fs)
    e("s_cmp_eq_u32 s62, 1"); e("s_cbranch_scc1 G2_wd")
    p2_wdma()
    lab("G2_wd")
    e("s_add_u32 s33, s33, 20480")
    e("s_add_u32 s47, s33, 4096")
    e("v_mul_u32_u24 v29, 20480, v1"); e("v_add_u32 v10, v29, v4")
    e("s_cmp_lg_u32 s22, 0"); e("s_cbranch_scc1 G2_go")
    e("s_lshl_b32 s48, s3, 8"); e("v_mov_b32 v6, 0"); e("s_mov_b32 s49, 0")
    lab("G2_spin")
    e("buffer_load_dword v5, v6, s[52:55], s48 offen sc1")
    e("s_waitcnt vmcnt(0)")
    e("v_readfirstlane_b32 s50, v5")
    e("s_cmp_ge_u32 s50, 32"); e("s_cbranch_scc1 G2_go")
    e("s_sleep 2")
    e("s_add_u32 s49, s49, 1"); e("s_cmp_lt_u32 s49, 0x4000"); e("s_cbranch_scc1 G2_spin")
    lab("G2_go")
    e("s_barrier")
    if 'clk' in X: e("s_memtime s[84:85]")
    def run(T):
        q = []
        def issue(tag, n):
            for _ in range(n): q.append(tag)
        for st in range(3): ldA(st); issue(("A",st),4)
        first = True
        for st in range(T):
            n = st+3
            if n < T:
                ldA(n%4); issue(("A",n),4)
                if n >= 7: ldW(n%4); issue(("A",n),5)
            last = max(i for i,t in enumerate(q) if t == ("A",st))
            cntv = len(q)-1-last
            e(f"s_waitcnt vmcnt({cntv}) lgkmcnt(0)")
            b = FR+36*(st%4)
            R = []
            if 3 <= st+1 < 7:
                bn = FR+36*((st+1)%4)
                R = [f"ds_read_b128 v[{bn+16+4*k}:{bn+16+4*k+3}], v10 offset:{(st+1-3)*5120+k*1024}" for k in range(5)]
            for nb in range(5):
                for mb in range(4):
                    a_ = ACC+(nb*4+mb)*4; w = b+16+nb*4; x = b+mb*4
                    e(f"v_mfma_f32_16x16x32_bf16 v[{a_}:{a_+3}], v[{w}:{w+3}], v[{x}:{x+3}], v[{a_}:{a_+3}]")
                    if R: e(R.pop(0))
    e("s_cmp_ge_u32 s22, 2"); e("s_cbranch_scc1 G2_h")
    run(10); e("s_branch G2_red")
    lab("G2_h")
    run(8)
    lab("G2_red")
    e("s_waitcnt vmcnt(0)"); e("s_nop 7")
    if 'clk' in X:
        e("s_memtime s[66:67]"); e("s_waitcnt lgkmcnt(0)")
        e("s_sub_u32 s66, s66, s60"); e("s_sub_u32 s80, s80, s60"); e("s_sub_u32 s82, s82, s60"); e("s_sub_u32 s84, s84, s60")
        srd(72, 64, 65, 256)
        e("v_mov_b32 v120, s80"); e("v_mov_b32 v121, s82"); e("v_mov_b32 v122, s84"); e("v_mov_b32 v123, s66"); e("v_mov_b32 v124, 0")
        e("s_cmp_gt_u32 s22, 3"); e("s_cbranch_scc1 G2_nc")
        e("s_and_b32 s70, s2, 0x7f"); e("s_cmp_lg_u32 s70, 0"); e("s_cbranch_scc1 G2_nc")
        e("s_lshr_b32 s70, s2, 7"); e("s_lshl_b32 s70, s70, 6"); e("s_lshl_b32 s71, s22, 4"); e("s_add_u32 s70, s70, s71")
        e("buffer_store_dwordx4 v[120:123], v124, s[72:75], s70 offen")
        lab("G2_nc")
    e("v_mul_u32_u24 v29, 20480, v1"); e("v_add_u32 v10, v29, v4")
    for i in range(20): e(f"ds_write_b128 v10, v[{ACC+4*i}:{ACC+4*i+3}] offset:{i*1024}")
    srd(12, 40, 41, X_SZ)
    e("s_and_b32 s37, s22, 3"); e("s_lshl_b32 s37, s37, 10"); e("s_lshr_b32 s36, s22, 2"); e("s_mul_i32 s36, s36, 12288"); e("s_add_u32 s37, s37, s36")
    e("v_add_u32 v10, s37, v4"); e(f"v_add_u32 v12, {3*WB}, v10"); e(f"v_add_u32 v13, {6*WB}, v10")
    e("s_waitcnt lgkmcnt(0)"); e("s_barrier")
    def rd(nb):
        r = 32+32*nb
        for k in range(8): e(f"ds_read_b128 v[{r+4*k}:{r+4*k+3}], v{(10,12,13)[k//3]} offset:{nb*4096+(k%3)*WB}")
    def fin(nb):
        r = 32+32*nb
        e(f"v_lshlrev_b32 v6, 16, v{14+2*nb}"); e(f"v_and_b32 v7, 0xffff0000, v{14+2*nb}")
        e(f"v_lshlrev_b32 v8, 16, v{15+2*nb}"); e(f"v_and_b32 v9, 0xffff0000, v{15+2*nb}")
        for j in range(4):
            e(f"v_add_f32 v{r+j}, v{r+j}, v{r+4+j}")
            e(f"v_add_f32 v{r+8+j}, v{r+8+j}, v{r+12+j}"); e(f"v_add_f32 v{r+16+j}, v{r+16+j}, v{r+20+j}"); e(f"v_add_f32 v{r+24+j}, v{r+24+j}, v{r+28+j}")
            e(f"v_add_f32 v{r+8+j}, v{r+8+j}, v{r+16+j}"); e(f"v_add_f32 v{r+8+j}, v{r+8+j}, v{r+24+j}")
            bf16r(f"v{r+8+j}", f"v{r+8+j}"); bf16r(f"v{r+j}", f"v{r+j}")
            e(f"v_add_f32 v{r+j}, v{6+j}, v{r+j}"); bf16r(f"v{r+j}", f"v{r+j}")
            e(f"v_add_f32 v{r+j}, v{r+j}, v{r+8+j}")
        e(f"v_cvt_pk_bf16_f32 v{r}, v{r}, v{r+1}"); e(f"v_cvt_pk_bf16_f32 v{r+1}, v{r+2}, v{r+3}")
        e(f"buffer_store_dwordx2 v[{r}:{r+1}], v11, s[12:15], 0 offen offset:{32*nb}")
    rd(0); rd(1)
    e("s_waitcnt lgkmcnt(8)"); fin(0)
    e("s_cmp_ge_u32 s22, 4"); e("s_cbranch_scc1 G2_two")
    rd(2); e("s_waitcnt lgkmcnt(8)"); fin(1); e("s_waitcnt lgkmcnt(0)"); fin(2); e("s_endpgm")
    lab("G2_two")
    e("s_waitcnt lgkmcnt(0)"); fin(1)

HEAD = open("parallel_sum__sliding_local_dilated__glu_gated_swiglu__prompt.s.ref").read().split("; @launch")[0]
gen_prep(); gen_g1()
txt = HEAD + """; @launch kernel=prep_kernel grid=(408,1,1) block=(256,1,1) lds=36864
; @launch kernel=g1_kernel grid=(256,1,1) block=(512,1,1) lds=163840
.amdgcn_target "amdgcn-amd-amdhsa--gfx950"
.text
""" + "\n".join(OUT) + '\n.section .rodata,"a"\n' + "\n".join(DESCS) + "\n"
open(os.environ.get("GO","k.s"), "w").write(txt)
```

```python
import sys, os
X=os.environ.get("GX","")
OUT = []
def e(s): OUT.append("    " + s)
def lab(s): OUT.append(s + ":")

W2_OFF, AP_OFF = 0xA00000, 0xD00000
W2_SZ, AP_SZ = 8*68*5*1024, 128*68*1024
FLG_OFF = AP_OFF + AP_SZ
FLG_SZ = 4096 + 2048*8
WS_SZ = FLG_OFF + FLG_SZ
RT_OFF = 0x4000000
H1 = int(os.environ.get("H1","8")); H2 = 18
def rt(i):
    if 'rt' in X: e(f"s_memrealtime s[{84+2*i}:{85+2*i}]")
def rtstore(kid, n, wsreg, vb):
    if 'rt' not in X: return
    e("s_waitcnt lgkmcnt(0)")
    e(f"s_add_u32 s72, s{wsreg}, {RT_OFF + kid*0x20000:#x}"); e(f"s_addc_u32 s73, s{wsreg+1}, 0"); e("s_and_b32 s73, s73, 0xffff"); e("s_mov_b32 s74, 0x20000"); e("s_mov_b32 s75, 0x00020000")
    for i in range(n): e(f"v_mov_b32 v{vb+i}, s{84+2*i}")
    for i in range(n,8): e(f"v_mov_b32 v{vb+i}, 0")
    e(f"v_lshrrev_b32 v{vb+8}, 6, v0"); e(f"v_lshlrev_b32 v{vb+8}, 5, v{vb+8}")
    e("s_lshl_b32 s70, s2, 8")
    e("s_mov_b64 exec, 1")
    e(f"buffer_store_dwordx4 v[{vb}:{vb+3}], v{vb+8}, s[72:75], s70 offen")
    e(f"buffer_store_dwordx4 v[{vb+4}:{vb+7}], v{vb+8}, s[72:75], s70 offen offset:16")
    e("s_mov_b64 exec, -1")
    e("s_waitcnt vmcnt(0)")
X_SZ = 2048*1280

def srd(d, lo, hi, size, add=0):
    if add:
        e(f"s_add_u32 s{d}, s{lo}, {add:#x}")
        e(f"s_addc_u32 s{d+1}, s{hi}, 0")
    else:
        e(f"s_mov_b32 s{d}, s{lo}")
        e(f"s_mov_b32 s{d+1}, s{hi}")
    e(f"s_and_b32 s{d+1}, s{d+1}, 0xffff")
    e(f"s_mov_b32 s{d+2}, {size:#x}")
    e(f"s_mov_b32 s{d+3}, 0x00020000")

def kstart(name):
    OUT.append(f".globl {name}\n.p2align 8\n.type {name},@function\n{name}:")

DESCS = []
def kdesc(name, vgpr, sgpr=100):
    acc = ((vgpr + 3)//4)*4
    DESCS.append(f""".p2align 6
.amdhsa_kernel {name}
  .amdhsa_next_free_vgpr {vgpr}
  .amdhsa_next_free_sgpr {sgpr}
  .amdhsa_accum_offset {acc}
  .amdhsa_group_segment_fixed_size 0
  .amdhsa_kernarg_size 80
  .amdhsa_user_sgpr_count 2
  .amdhsa_user_sgpr_kernarg_segment_ptr 1
  .amdhsa_system_sgpr_workgroup_id_x 1
.end_amdhsa_kernel""")

def bf16r(dst, src):
    e(f"v_cvt_pk_bf16_f32 {dst}, {src}, {src}")
    e(f"v_lshlrev_b32 {dst}, 16, {dst}")

def divc(q, r, src, d, maxv):
    for sh in range(8, 25):
        m = ((1 << sh) + d - 1)//d
        if m >= (1 << 24) or m*(maxv-1) >= (1 << 32): continue
        if all((i*m) >> sh == i//d for i in range(maxv)): break
    else: raise Exception("no magic")
    e(f"v_mul_u32_u24 {q}, {m}, {src}"); e(f"v_lshrrev_b32 {q}, {sh}, {q}")
    if r:
        e(f"v_mul_u32_u24 {r}, {d}, {q}"); e(f"v_sub_u32 {r}, {src}, {r}")

NT = 20
ACC = 32
def gen_g1():
    kstart("g1_kernel")
    e("s_cmp_ge_u32 s2, 256"); e("s_cbranch_scc1 G1_done")
    rt(0)
    e("s_load_dwordx2 s[16:17], s[0:1], 0")
    e("s_load_dwordx2 s[18:19], s[0:1], 72")
    e("s_load_dwordx4 s[24:27], s[0:1], 32")
    e("s_load_dwordx2 s[28:29], s[0:1], 8")
    e("s_load_dwordx2 s[80:81], s[0:1], 16")
    e("s_load_dwordx2 s[82:83], s[0:1], 48")
    e("s_and_b32 s3, s2, 7"); e("s_lshr_b32 s20, s2, 3")
    e("v_lshrrev_b32 v1, 6, v0"); e("v_and_b32 v2, 63, v0"); e("s_nop 0")
    e("v_readfirstlane_b32 s22, v1")
    e("v_lshlrev_b32 v4, 4, v2")
    e("s_mov_b32 s50, 0xffff0000")
    e("v_lshrrev_b32 v10, 4, v2"); e("v_and_b32 v11, 1, v1"); e("v_lshl_add_u32 v10, v11, 2, v10")
    e("v_and_b32 v11, 7, v2"); e("v_xor_b32 v10, v10, v11")
    e("v_lshrrev_b32 v11, 3, v2"); e("v_mul_u32_u24 v11, 1280, v11"); e("v_lshl_add_u32 v5, v10, 4, v11")
    e("v_and_b32 v10, 15, v2"); e("v_lshrrev_b32 v11, 1, v10"); e("v_lshrrev_b32 v12, 4, v2"); e("v_xor_b32 v11, v11, v12")
    e("v_lshlrev_b32 v10, 7, v10"); e("v_lshl_add_u32 v3, v11, 4, v10")
    e("s_waitcnt lgkmcnt(0)")
    srd(8, 16, 17, X_SZ)
    e("s_mov_b32 s38, s10")
    srd(64, 18, 19, FLG_SZ, FLG_OFF)
    e("s_lshl_b32 s40, s2, 3"); e("s_add_u32 s40, s40, s22"); e("s_lshl_b32 s68, s40, 3"); e("s_add_u32 s68, s68, 4096")
    e("s_mul_i32 s41, s40, 1280")
    e("v_lshlrev_b32 v10, 2, v2"); e("v_mov_b32 v11, 0")
    e("buffer_load_dword v239, v11, s[64:67], s68 offen offset:4 sc1")
    for j in range(5): e(f"buffer_load_dword v{128+j}, v10, s[8:11], s41 offen offset:{256*j}")
    e("v_and_b32 v12, 31, v2"); e("v_lshlrev_b32 v12, 2, v12"); e("s_lshl_b32 s40, s3, 7")
    e("buffer_load_dword v232, v12, s[64:67], s40 offen sc1")
    e("v_lshlrev_b32 v12, 3, v2")
    e("buffer_load_dwordx2 v[234:235], v12, s[64:67], 0 offen offset:1024 sc1")
    e(f"s_mov_b32 s78, {(1<<H1)|(1<<H2):#x}")
    e("s_mov_b32 s36, 0"); e("s_mov_b32 s37, 0")
    e("s_mov_b32 s48, 0"); e("s_mov_b32 s49, 0")
    e("s_cmp_ge_u32 s20, 16"); e("s_cbranch_scc1 G1_qkv")

    def rowstat(nd):
        e(f"s_waitcnt vmcnt({nd})")
        for j in range(5):
            e(f"v_lshlrev_b32 v{134+2*j}, 16, v{128+j}"); e(f"v_and_b32 v{135+2*j}, s50, v{128+j}")
        e("v_readfirstlane_b32 s76, v233"); e("v_add_u32 v239, 1, v239")
        def wsum(v, sd):
            for k in (8,4,2,1):
                e("s_nop 1"); e(f"v_add_f32_dpp {v}, {v}, {v} row_ror:{k} row_mask:0xf bank_mask:0xf")
            e("s_nop 1"); e(f"v_add_f32_dpp {v}, {v}, {v} row_bcast:15 row_mask:0xa bank_mask:0xf")
            e("s_nop 1"); e(f"v_add_f32_dpp {v}, {v}, {v} row_bcast:31 row_mask:0xc bank_mask:0xf")
            e("s_nop 1"); e(f"v_readlane_b32 {sd}, {v}, 63")
        e("v_add_f32 v144, v134, v135"); e("v_add_f32 v145, v136, v137")
        for j in range(4,10,2): e(f"v_add_f32 v144, v144, v{134+j}"); e(f"v_add_f32 v145, v145, v{135+j}")
        e("v_add_f32 v144, v144, v145")
        wsum("v144", "s40")
        e("s_add_u32 s76, s76, 1")
        e("v_mov_b32 v146, 0x3acccccd"); e("v_mul_f32 v147, s40, v146")
        for j in range(10): e(f"v_sub_f32 v{134+j}, v{134+j}, v147")
        e("v_mul_f32 v144, v134, v134"); e("v_mul_f32 v145, v135, v135")
        for j in range(2,10,2): e(f"v_fmac_f32 v144, v{134+j}, v{134+j}"); e(f"v_fmac_f32 v145, v{135+j}, v{135+j}")
        e("v_add_f32 v144, v144, v145")
        wsum("v144", "s40")
        e("v_mul_f32 v148, s40, v146")
        bf16r("v148", "v148")
        e("v_add_f32 v148, 0x3727c5ac, v148"); bf16r("v148", "v148")
        e("v_sqrt_f32 v148, v148"); e("s_nop 0")
        e("v_cvt_pk_bf16_f32 v238, v147, v148")
    def statget(tagl, nrows, base):
        e("s_mov_b32 s40, 0")
        lab(f"{tagl}_sp")
        e("v_cmp_eq_u32 vcc, v239, v236"); e("s_cmp_eq_u64 vcc, 0"); e(f"s_cbranch_scc1 {tagl}_so")
        e("s_sleep 2")
        e("buffer_load_dwordx2 v[238:239], v237, s[64:67], 0 offen sc1")
        e("s_waitcnt vmcnt(0)")
        e("s_add_u32 s40, s40, 1"); e("s_cmp_lt_u32 s40, 0x4000"); e(f"s_cbranch_scc1 {tagl}_sp")
        lab(f"{tagl}_so")
        e("v_and_b32 v239, s50, v238"); e("v_rcp_f32 v239, v239"); e("v_lshlrev_b32 v238, 16, v238")
        e("v_lshlrev_b32 v10, 3, v0"); e(f"v_add_u32 v10, {base}, v10")
        e(f"v_cmp_gt_u32 vcc, {nrows}, v0"); e("s_and_saveexec_b64 s[40:41], vcc")
        e(f"ds_write_b64 v10, v[238:239]")
        e("s_mov_b64 exec, s[40:41]")
    def mainloop(tag, dma0, per, addrs, reads, na, nw, pairs, FR, valu, late, stat, nd, pk=False):
        def dma(*a):
            L = []
            for d in dma0(*a):
                if d.startswith("buffer_load") and L and " m0," in L[-1]: L.append("s_nop 0")
                L.append(d)
            return L
        fsz = 4*(na+nw) + 8
        for d in dma(1, True, True): e(d)
        for fs in (0,1,0,1):
            for d in dma(fs, True, False): e(d)
        rowstat(nd)
        if pk: packproc()
        late()
        for i in range(4*len(pairs)): e(f"v_mov_b32 v{ACC+i}, 0")
        e("s_mov_b32 s35, 0")
        e(f"s_waitcnt vmcnt({3*per})"); addrs(0, False); e("s_barrier")
        for r in reads(FR): e(r)
        rt(1)
        lab(f"{tag}_loop")
        for fs in range(2):
            e(f"s_waitcnt vmcnt({2*per})")
            addrs(1-fs, True); e("s_waitcnt lgkmcnt(0)"); e("s_barrier")
            Dq = dma(fs, False, False); R = reads(FR + fsz*(1-fs))
            b = FR + fsz*fs
            Vq = valu(b)
            if 'nov' in X: Vq = []
            ML = [(ACC+4*p, b+4*na+4*wi, b+4*ai) for p,(ai,wi) in enumerate(pairs)]
            for k,(ai,sr,one) in enumerate(stat):
                pos = (k+1)*len(ML)//(len(stat)+1)
                ML[pos:pos] = [(sr, b+4*ai, b+4*ai), (sr+4, one, b+4*ai)]
            n = len(ML)
            vper = (len(Vq) + n - 1)//n
            rper = (len(R) + n - 3)//(n-2)
            for (a_, w, x) in ML:
                e(f"v_mfma_f32_16x16x32_bf16 v[{a_}:{a_+3}], v[{w}:{w+3}], v[{x}:{x+3}], v[{a_}:{a_+3}]")
                for _ in range(rper):
                    if R: e(R.pop(0))
                if Dq: e(Dq.pop(0))
                for _ in range(vper):
                    if Vq: e(Vq.pop(0))
            for r in R: e(r)
            for d in Dq: e(d)
            for v in Vq: e(v)
            e("s_add_u32 s35, s35, 1")
        e(f"s_bitcmp1_b32 s78, s35"); e(f"s_cbranch_scc0 {tag}_bk")
        e(f"s_cmp_eq_u32 s35, {H1}"); e(f"s_cbranch_scc0 {tag}_h2")
        e("v_mov_b32 v233, 0"); e("s_mov_b64 exec, 1")
        e("buffer_store_dwordx2 v[238:239], v233, s[64:67], s68 offen sc1")
        e("s_mov_b64 exec, -1"); e(f"s_branch {tag}_bk")
        lab(f"{tag}_h2")
        e("buffer_load_dwordx2 v[238:239], v237, s[64:67], 0 offen sc1")
        lab(f"{tag}_bk")
        e(f"s_cmp_lt_i32 s35, {NT}"); e(f"s_cbranch_scc1 {tag}_loop")
        e("s_waitcnt vmcnt(0) lgkmcnt(0)")
        rt(2)
        e("s_barrier")

    tc=[0]
    def tmp(TB):
        tc[0] = (tc[0]+1) % 4
        return TB + 2*tc[0]
    def stat_ops(areg, sreg, TB):
        L=[]
        for q in range(4):
            t = tmp(TB)
            L += [f"v_lshlrev_b32 v{t}, 16, v{areg+q}", f"v_and_b32 v{t+1}, s50, v{areg+q}",
                  f"v_add_f32 v{sreg}, v{sreg}, v{t}", f"v_add_f32 v{sreg+1}, v{sreg+1}, v{t+1}",
                  f"v_fmac_f32 v{sreg+2}, v{t}, v{t}", f"v_fmac_f32 v{sreg+3}, v{t+1}, v{t+1}"]
        return L
    def cs_ops(base, creg, TB):
        L=[]
        for q in range(8):
            t = tmp(TB); c = creg + 2*(q&3)
            L += [f"v_lshlrev_b32 v{t}, 16, v{base+q}", f"v_and_b32 v{t+1}, s50, v{base+q}",
                  f"v_add_f32 v{c}, v{c}, v{t}", f"v_add_f32 v{c+1}, v{c+1}, v{t+1}"]
        return L
    def finstat(S, Q, t):
        e(f"v_mul_f32 {S}, 0x3acccccd, {S}"); e(f"v_mul_f32 {Q}, 0x3acccccd, {Q}")
        e(f"v_fma_f32 {Q}, -{S}, {S}, {Q}"); e(f"v_max_f32 {Q}, 0, {Q}")
        bf16r(S, S); bf16r(Q, Q)
        e(f"v_add_f32 {Q}, 0x3727c5ac, {Q}"); bf16r(Q, Q)
        e(f"v_sqrt_f32 {Q}, {Q}"); e("s_nop 0"); bf16r(Q, Q)
        e(f"v_rcp_f32 {Q}, {Q}"); e("s_nop 0")
    def exchange(ncp, CR, B):
        STB = 0; CSP = 8192; RS = CSP + 16*ncp*32; CST = RS + 2048
        e(f"v_cmp_gt_u32 vcc, {16*ncp}, v0"); e("s_and_saveexec_b64 s[40:41], vcc")
        e(f"ds_write_b128 v27, v[{CR}:{CR+3}] offset:{CSP}"); e(f"ds_write_b128 v27, v[{CR+4}:{CR+7}] offset:{CSP+16}")
        e("s_mov_b64 exec, s[40:41]")
        e("s_waitcnt lgkmcnt(0)"); e("s_barrier")
        cnt[0] += 1; c = cnt[0]
        e("s_cmp_lt_u32 s22, 4"); e(f"s_cbranch_scc1 X{c}_d")
        lab(f"X{c}_c")
        e("v_subrev_u32 v10, 256, v0"); e("v_lshlrev_b32 v10, 2, v10"); e(f"v_add_u32 v10, {B}, v10")
        for r in range(16): e(f"ds_read_b32 v{128+r}, v10 offset:{CSP+r*ncp*32}")
        e("s_waitcnt lgkmcnt(0)")
        for st in (8,4,2,1):
            for r in range(st): e(f"v_add_f32 v{128+r}, v{128+r}, v{128+r+st}")
        e(f"ds_write_b32 v10, v128 offset:{CST}")
        lab(f"X{c}_d")
        e("s_waitcnt lgkmcnt(0)"); e("s_barrier")
        return RS, CST
    cnt=[0]
    def rowfin(sr, vaddr, off):
        e(f"v_cndmask_b32 v{sr}, v{sr}, v{sr+1}, s[56:57]"); e(f"v_cndmask_b32 v{sr}, v{sr}, v{sr+2}, s[58:59]"); e(f"v_cndmask_b32 v{sr+5}, v{sr}, v{sr+3}, s[60:61]")
        finstat(f"v{sr+4}", f"v{sr+5}", None)
        e("s_mov_b64 exec, s[62:63]")
        e(f"ds_write_b64 {vaddr}, v[{sr+4}:{sr+5}] offset:{off}")
        e("s_mov_b64 exec, -1")
    def rowmasks():
        e("v_and_b32 v10, 3, v2"); e("v_cmp_eq_u32 s[56:57], 1, v10"); e("v_cmp_eq_u32 s[58:59], 2, v10"); e("v_cmp_eq_u32 s[60:61], 3, v10")
        e("v_bfe_u32 v10, v2, 2, 2"); e("v_lshrrev_b32 v11, 4, v2"); e("v_cmp_eq_u32 s[62:63], v10, v11")
    def lnfix(g, cs, ms):
        for h in (0,2):
            e(f"v_pk_fma_f32 v[{g+h}:{g+h+1}], v[{cs+h}:{cs+h+1}], v[{ms}:{ms+1}], v[{g+h}:{g+h+1}] op_sel:[0,0,0] op_sel_hi:[1,0,1] neg_lo:[0,1,0] neg_hi:[0,1,0]")
        for h in (0,2):
            e(f"v_pk_mul_f32 v[{g+h}:{g+h+1}], v[{g+h}:{g+h+1}], v[{ms}:{ms+1}] op_sel:[0,1] op_sel_hi:[1,1]")

    AB = 32768; WBF = 12288; WRF = 3*AB
    e("s_lshl_b32 s23, s3, 1"); e("s_and_b32 s21, s20, 1"); e("s_add_u32 s23, s23, s21")
    e("s_lshr_b32 s21, s20, 1")
    e("s_lshl_b32 s69, s21, 7"); e("s_lshl_b32 s40, s23, 2"); e("s_add_u32 s69, s69, s40")
    e("buffer_load_dword v233, v11, s[64:67], s69 offen sc1")
    e("s_lshl_b32 s40, s21, 11"); e("s_add_u32 s40, s40, 4096")
    e("v_and_b32 v237, 255, v0"); e("v_lshlrev_b32 v237, 3, v237"); e("v_add_u32 v237, s40, v237")
    e("buffer_load_dword v236, v237, s[64:67], 0 offen offset:4 sc1")
    e("s_cmp_lt_u32 s22, 6"); e("s_cselect_b32 s12, s24, s26"); e("s_cselect_b32 s13, s25, s27")
    e("s_and_b32 s13, s13, 0xffff"); e(f"s_mov_b32 s14, {640*3072}"); e("s_mov_b32 s15, 0x00020000")
    e("s_mov_b32 s39, s14")
    e("s_mov_b32 s44, s26"); e("s_and_b32 s45, s27, 0xffff"); e("s_mov_b32 s47, 0x00020000")
    e("s_cmp_lt_u32 s22, 4"); e("s_cselect_b32 s43, s39, 0"); e("s_cselect_b32 s42, 1, 0")
    e("s_mov_b32 s24, s23")
    e("s_mov_b32 s46, s43")
    def wpat(dst, jc):
        divc("v10", "v11", jc, 3, 8)
        e("v_lshl_add_u32 v11, v11, 6, v2")
        divc("v12", "v13", "v11", 12, 192)
        e("v_lshl_add_u32 v12, v10, 4, v12")
        e("v_bfe_u32 v10, v12, 3, 1"); e("v_lshlrev_b32 v10, 1, v10"); e("v_xor_b32 v13, v13, v10")
        e("v_mul_u32_u24 v12, 3072, v12"); e(f"v_lshl_add_u32 {dst}, v13, 4, v12")
    e("v_subrev_u32 v14, 6, v1"); e("v_cmp_gt_u32 vcc, 6, v1"); e("v_cndmask_b32 v14, v14, v1, vcc"); wpat("v6", "v14")
    e("v_add_u32 v14, 2, v1"); e("v_and_b32 v14, 7, v14"); e("v_min_u32 v14, 5, v14"); wpat("v7", "v14")
    e("s_lshl_b32 s25, s21, 5"); e("s_add_u32 s25, s25, s22"); e("s_mul_i32 s32, s25, 10240")
    e("s_mul_i32 s33, s24, 192")
    e("s_lshl_b32 s30, s22, 10")
    e(f"s_add_u32 s26, s30, {WRF+8192}"); e("s_cmp_lt_u32 s22, 4"); e(f"s_cselect_b32 s29, s26, {WRF+4*WBF}")
    def dmaF(fs, pro, aonly):
        L = []
        if not pro:
            L += [f"s_cmp_lt_i32 s35, {16-fs}", "s_cselect_b32 s10, s38, 0", "s_cmp_lt_i32 s35, 16", "s_cselect_b32 s14, s39, 0", "s_cselect_b32 s46, s43, 0"]
        hb = (1-fs)*16
        L += [f"s_add_u32 s40, s30, s36", f"s_add_u32 m0, s40, {hb*1024}", f"s_add_u32 s41, s32, {hb*10240}",
          "buffer_load_dwordx4 v5, s[8:11], s41 offen lds",
          f"s_add_u32 m0, s40, {hb*1024+8192}", f"s_add_u32 s41, s32, {(hb+8)*10240}",
          "buffer_load_dwordx4 v5, s[8:11], s41 offen lds"]
        if fs == 0:
            L += ["s_add_u32 s32, s32, 128", f"s_add_u32 s36, s36, {AB}", f"s_cmp_eq_u32 s36, {3*AB}", "s_cselect_b32 s36, 0, s36"]
        if aonly: return L
        L += ["s_add_u32 s40, s30, s48", f"s_add_u32 m0, s40, {WRF}", "s_mul_i32 s40, s48, s42",
          "buffer_load_dwordx4 v6, s[12:15], s33 offen lds",
          "s_add_u32 m0, s40, s29",
          "buffer_load_dwordx4 v7, s[44:47], s33 offen lds",
          f"s_add_u32 s33, s33, {32*3072}",
          f"s_add_u32 s48, s48, {WBF}", f"s_cmp_eq_u32 s48, {4*WBF}", "s_cselect_b32 s48, 0, s48"]
        return L
    SF = 224; CF = 240; TF = 248; ONF = 28
    def lateF():
        e("v_and_b32 v14, 3, v1"); e("v_lshl_add_u32 v14, v14, 13, v3")
        e("v_lshrrev_b32 v15, 2, v1"); e("v_lshl_add_u32 v10, v15, 12, v14"); e("v_xor_b32 v11, 4096, v10")
        e("v_xor_b32 v12, 64, v10"); e("v_xor_b32 v13, 64, v11")
        e("v_lshrrev_b32 v17, 4, v2"); e("v_bfe_u32 v18, v2, 2, 2"); e("v_lshl_add_u32 v18, v17, 3, v18"); e("v_mul_u32_u24 v18, 192, v18")
        e(f"v_add_u32 v18, {WRF}, v18")
        e("v_and_b32 v17, 1, v17"); e("v_lshlrev_b32 v17, 5, v17")
        e("v_and_b32 v19, 3, v2"); e("v_lshlrev_b32 v19, 3, v19"); e("v_mul_u32_u24 v15, 96, v15"); e("v_add_u32 v19, v19, v15")
        for j in range(3):
            e(f"v_add_u32 v20, {32*j}, v19"); e("v_xor_b32 v20, v20, v17"); e(f"v_add_u32 v{14+j}, v20, v18")
        divc("v18", "v19", "v0", 24, 512); e("v_and_b32 v18, 15, v18")
        e("v_mul_u32_u24 v27, 768, v18"); e("v_lshl_add_u32 v27, v19, 5, v27")
        divc("v20", "v21", "v19", 12, 24)
        e("v_bfe_u32 v17, v18, 3, 1"); e("v_lshlrev_b32 v17, 1, v17"); e("v_xor_b32 v21, v21, v17")
        e("v_mul_u32_u24 v20, 6144, v20"); e("v_mul_u32_u24 v18, 192, v18"); e("v_add_u32 v20, v20, v18"); e("v_lshl_add_u32 v20, v21, 4, v20")
        e(f"v_add_u32 v17, {WRF}, v20")
        for i in range(8): e(f"v_mov_b32 v{CF+i}, 0")
    def addrsF(h, adv):
        if adv:
            if h == 0: e(f"s_add_u32 s37, s37, {AB}"); e(f"s_cmp_eq_u32 s37, {3*AB}"); e("s_cselect_b32 s37, 0, s37")
            e(f"s_add_u32 s49, s49, {WBF}"); e(f"s_cmp_eq_u32 s49, {4*WBF}"); e("s_cselect_b32 s49, 0, s49")
        e(f"v_add_u32 v22, s37, v{10+2*h}"); e(f"v_add_u32 v23, s37, v{11+2*h}")
        for j in range(4): e(f"v_add_u32 v{(24,25,26,21)[j]}, s49, v{14+j}")
    def readsF(b):
        L = []
        for i in range(4): L.append(f"ds_read_b128 v[{b+4*i}:{b+4*i+3}], v{22+(i>>1)} offset:{2048*(i&1)}")
        for f in range(6):
            for h in range(2):
                r = b+16+4*f+2*h
                L.append(f"ds_read_b64_tr_b16 v[{r}:{r+1}], v{24+f%3} offset:{6144*(f//3)+768*h}")
        L += [f"ds_read_b128 v[{b+40}:{b+43}], v21", f"ds_read_b128 v[{b+44}:{b+47}], v21 offset:3072"]
        return L
    def valuF(b): return cs_ops(b+40, CF, TF)
    pairsF = [(mb, nb) for nb in range(6) for mb in range(4)]
    mainloop("G1F", dmaF, 4, addrsF, readsF, 4, 6, pairsF, 128, valuF, lateF, [], 18)
    RS = 8192 + 16*24*32
    statget("G1F", 256, RS)
    e("v_and_b32 v12, 15, v2"); e("v_lshrrev_b32 v13, 4, v2"); e("v_lshlrev_b32 v12, 5, v12")
    e("v_and_b32 v14, 3, v1"); e("v_lshl_add_u32 v12, v14, 11, v12")
    e("v_lshrrev_b32 v15, 2, v1"); e("v_lshl_add_u32 v12, v15, 10, v12")
    e("v_lshrrev_b32 v12, 2, v12"); e("v_xor_b32 v14, 256, v12")
    RS, CST = exchange(24, CF, 0)
    MS = 200; CS = 176
    for i in range(4): e(f"ds_read_b64 v[{MS+2*i}:{MS+2*i+1}], v{(12,14)[i>>1]} offset:{RS+128*(i&1)}")
    e("v_mul_u32_u24 v15, 192, v15"); e("v_lshl_add_u32 v15, v13, 4, v15")
    for f in range(6): e(f"ds_read_b128 v[{CS+4*f}:{CS+4*f+3}], v15 offset:{CST+384*(f//3)+64*(f%3)}")
    srd(8, 18, 19, AP_SZ, AP_OFF)
    e("s_lshr_b32 s26, s22, 2")
    e("s_lshl_b32 s25, s21, 4"); e("s_and_b32 s27, s22, 3"); e("s_lshl_b32 s27, s27, 2"); e("s_add_u32 s25, s25, s27")
    e("s_lshl_b32 s27, s26, 1"); e("s_add_u32 s25, s25, s27")
    e("s_mul_i32 s25, s25, 69632")
    e("s_mul_i32 s27, s24, 3072"); e("s_add_u32 s25, s25, s27"); e("s_add_u32 s25, s25, 20480")
    e("s_lshl_b32 s27, s26, 10"); e("s_add_u32 s27, s27, s25")
    e("s_lshl_b32 s28, s26, 3"); e("s_add_u32 s28, s28, s25"); e("s_add_u32 s28, s28, 2048")
    e(f"s_mov_b32 s29, {69632}"); e("s_cmp_eq_u32 s26, 0"); e(f"s_cselect_b32 s29, s29, {-3*69632 & 0xffffffff:#x}")
    e("s_mov_b32 s36, 0xbfb8aa3b"); e("s_mov_b32 s37, 0xbfb8aa3b"); e("s_mov_b32 s40, 1.0"); e("s_mov_b32 s41, 1.0")
    e("s_waitcnt lgkmcnt(0)")
    T = 128
    for mb in range(4):
        G = [ACC+(b*4+mb)*4 for b in range(3)]; U = [ACC+((b+3)*4+mb)*4 for b in range(3)]
        for b in range(3): lnfix(G[b], CS+4*b, MS+2*mb)
        for b in range(3):
            for h in (0,2): e(f"v_pk_mul_f32 v[{T+4*b+h}:{T+4*b+h+1}], v[{G[b]+h}:{G[b]+h+1}], s[36:37]")
        for k in range(12): e(f"v_exp_f32 v{T+k}, v{T+k}")
        for b in range(3): lnfix(U[b], CS+4*(b+3), MS+2*mb)
        for k in range(0,12,2): e(f"v_pk_add_f32 v[{T+k}:{T+k+1}], v[{T+k}:{T+k+1}], s[40:41]")
        for k in range(12): e(f"v_rcp_f32 v{T+k}, v{T+k}")
        for b in range(3):
            for h in (0,2): e(f"v_pk_mul_f32 v[{G[b]+h}:{G[b]+h+1}], v[{G[b]+h}:{G[b]+h+1}], v[{U[b]+h}:{U[b]+h+1}]")
        for b in range(3):
            for h in (0,2): e(f"v_pk_mul_f32 v[{T+4*b+h}:{T+4*b+h+1}], v[{T+4*b+h}:{T+4*b+h+1}], v[{G[b]+h}:{G[b]+h+1}]")
        O = 144+8*mb
        for k in range(6): e(f"v_cvt_pk_bf16_f32 v{O+k}, v{T+2*k}, v{T+2*k+1}")
        e(f"buffer_store_dwordx4 v[{O}:{O+3}], v4, s[8:11], s27 offen"+" sc1")
        e(f"buffer_store_dwordx2 v[{O+4}:{O+5}], v4, s[8:11], s28 offen"+" sc1")
        if mb == 1: e("s_add_u32 s27, s27, s29"); e("s_add_u32 s28, s28, s29")
        elif mb < 3: e("s_add_u32 s27, s27, 69632"); e("s_add_u32 s28, s28, 69632")
    e("s_branch G1_sync")

    def packload():
        cnt[0] += 1; c = cnt[0]
        e("s_mov_b32 s51, 0")
        e("s_cmp_lt_u32 s22, 5"); e(f"s_cbranch_scc1 PK{c}_no")
        e("s_lshl_b32 s23, s21, 3"); e("s_add_u32 s23, s23, s3"); e("s_mul_i32 s23, s23, 3"); e("s_add_u32 s23, s23, s22"); e("s_sub_u32 s23, s23, 5")
        e("s_cmp_ge_u32 s23, 340"); e(f"s_cbranch_scc1 PK{c}_no")
        e("s_mov_b32 s51, 1")
        e("s_cmp_ge_u32 s23, 100"); e("s_cselect_b32 s52, s82, s80"); e("s_cselect_b32 s53, s83, s81"); e("s_cselect_b32 s25, 100, 0"); e("s_cselect_b32 s26, 1, 0")
        e("s_sub_u32 s23, s23, s25")
        e("v_mov_b32 v20, s23")
        divc("v12", "v13", "v20", 5, 240)
        e("v_bfe_u32 v18, v2, 4, 2"); e("v_lshl_add_u32 v12, v12, 2, v18"); e("v_and_b32 v18, 15, v2"); e("v_lshl_add_u32 v13, v13, 4, v18")
        divc("v16", "v17", "v13", 10, 80)
        e("v_lshrrev_b32 v14, 1, v17")
        e("v_lshrrev_b32 v18, 2, v12")
        e("s_mul_i32 s27, s26, 20")
        e("v_mul_u32_u24 v16, 68, v16"); e("v_add_u32 v16, v16, v18"); e("v_add_u32 v16, s27, v16")
        e("v_mul_u32_u24 v16, 5, v16"); e("v_add_u32 v16, v16, v14")
        e(f"s_mov_b32 s54, {640*1280}")
        e("s_cmp_eq_u32 s26, 0"); e(f"s_cbranch_scc1 PK{c}_wo")
        e(f"s_mov_b32 s54, {1536*1280}")
        divc("v22", "v23", "v18", 3, 48)
        e("v_and_b32 v24, 3, v12")
        e("v_mul_u32_u24 v22, 96, v22"); e("v_lshl_add_u32 v22, v24, 2, v22")
        e("v_cmp_eq_u32 vcc, 1, v23"); e("v_mov_b32 v25, 48"); e("v_cndmask_b32 v24, 0, v25, vcc")
        e("v_cmp_eq_u32 vcc, 2, v23"); e("v_mov_b32 v26, 32"); e("v_cndmask_b32 v24, v24, v26, vcc")
        e("v_mov_b32 v26, 16"); e("v_cndmask_b32 v25, v26, v25, vcc")
        e("v_add_u32 v22, v22, v24")
        e("v_add_u32 v23, v22, v25")
        e("v_mul_u32_u24 v20, 1280, v22"); e("v_lshl_add_u32 v20, v13, 4, v20")
        e("v_mul_u32_u24 v21, 1280, v23"); e("v_lshl_add_u32 v21, v13, 4, v21")
        e(f"s_branch PK{c}_go")
        lab(f"PK{c}_wo")
        e("v_mul_u32_u24 v20, 8*1280, v12"); e("v_lshl_add_u32 v20, v13, 4, v20"); e("v_add_u32 v21, 4*1280, v20")
        lab(f"PK{c}_go")
        e("v_lshlrev_b32 v16, 10, v16"); e("v_and_b32 v18, 3, v12"); e("v_lshl_add_u32 v16, v18, 8, v16")
        e("v_and_b32 v18, 1, v17"); e(f"v_lshl_add_u32 v252, v18, 7, v16")
        e("s_and_b32 s53, s53, 0xffff"); e("s_mov_b32 s55, 0x00020000")
        for i in range(8):
            e(f"buffer_load_dwordx4 v[{160+4*i}:{163+4*i}], v{20+(i>>2)}, s[52:55], 0 offen offset:{1280*(i&3)}")
        lab(f"PK{c}_no")
    PKB = 116736
    def packproc():
        cnt[0] += 1; c = cnt[0]
        e("s_cmp_eq_u32 s51, 0"); e(f"s_cbranch_scc1 PP{c}_no")
        e("s_mov_b32 s40, 0x05040100"); e("s_mov_b32 s41, 0x07060302")
        srd(52, 18, 19, W2_SZ, W2_OFF)
        for c_ in range(8):
            for q in range(4):
                e(f"v_perm_b32 v{48+4*c_+q}, v{160+4*(2*q+1)+(c_>>1)}, v{160+4*(2*q)+(c_>>1)}, s{40+(c_&1)}")
        e("s_sub_u32 s25, s22, 5"); e("s_mul_i32 s25, s25, 9216"); e(f"s_add_u32 s25, s25, {PKB}")
        e("v_bfe_u32 v12, v2, 1, 3"); e("v_bfe_u32 v13, v2, 4, 2"); e("v_and_b32 v14, 1, v2")
        e("v_lshlrev_b32 v12, 3, v12"); e("v_lshl_add_u32 v12, v13, 1, v12"); e("v_add_u32 v12, v12, v14")
        e("v_mul_u32_u24 v12, 144, v12"); e("v_add_u32 v12, s25, v12")
        for c_ in range(8): e(f"ds_write_b128 v12, v[{48+4*c_}:{51+4*c_}] offset:{16*c_}")
        e("v_bfe_u32 v13, v2, 3, 3"); e("v_mul_u32_u24 v13, 144, v13"); e("v_and_b32 v14, 7, v2"); e("v_lshl_add_u32 v13, v14, 4, v13"); e("v_add_u32 v13, s25, v13")
        for i in range(8): e(f"v_readlane_b32 s{56+i}, v252, {2*i}")
        e("s_waitcnt lgkmcnt(0)")
        for i in range(8): e(f"ds_read_b128 v[{160+4*i}:{163+4*i}], v13 offset:{1152*i}")
        for i in range(8):
            e(f"s_waitcnt lgkmcnt({7-i})")
            e(f"buffer_store_dwordx4 v[{160+4*i}:{163+4*i}], v4, s[52:55], s{56+i} offen"+" sc1")
        lab(f"PP{c}_no")
    lab("G1_qkv")
    AQ = 18432; WBQ = 15360; WRQ = 3*AQ
    e("s_sub_u32 s21, s20, 16")
    e("s_lshr_b32 s69, s21, 1"); e("s_lshl_b32 s69, s69, 7"); e("s_and_b32 s40, s21, 1"); e("s_lshl_b32 s40, s40, 3"); e("s_add_u32 s40, s40, s3")
    e("s_lshl_b32 s40, s40, 2"); e("s_add_u32 s69, s69, s40"); e("s_add_u32 s69, s69, 64")
    e("buffer_load_dword v233, v11, s[64:67], s69 offen sc1")
    e("s_lshl_b32 s40, s21, 7"); e("s_sub_u32 s40, s40, 16")
    e("v_min_u32 v237, 143, v0"); e("v_add_u32 v237, s40, v237"); e("v_max_i32 v237, 0, v237"); e("v_lshlrev_b32 v237, 3, v237"); e("v_add_u32 v237, 4096, v237")
    e("buffer_load_dword v236, v237, s[64:67], 0 offen offset:4 sc1")
    packload()
    srd(12, 28, 29, 640*3840)
    e("s_mov_b32 s39, s14")
    e("s_lshl_b32 s25, s21, 4"); e("s_sub_u32 s25, s25, 2")
    e("s_add_u32 s26, s25, s22"); e("s_max_i32 s27, s26, 0"); e("s_mul_i32 s32, s27, 10240")
    e("s_add_u32 s26, s26, 9"); e("s_mul_i32 s31, s26, 10240")
    e("s_add_u32 s26, s25, 8"); e("s_mul_i32 s34, s26, 10240")
    e("s_mul_i32 s33, s3, 160")
    e("s_cmp_eq_u32 s22, 0")
    e("s_cselect_b32 s44, s8, s12"); e("s_cselect_b32 s45, s9, s13"); e("s_cselect_b32 s43, s38, s39"); e("s_mov_b32 s47, 0x00020000")
    e("s_mov_b32 s46, s43")
    e("s_lshl_b32 s30, s22, 10")
    e("v_xor_b32 v6, 64, v5")
    def qpat(dst, jc):
        e(f"v_lshl_add_u32 v11, {jc}, 6, v2")
        divc("v12", "v13", "v11", 30, 960)
        divc("v10", "v11", "v13", 10, 30)
        e("v_and_b32 v13, 0x13, v12"); e("v_bfe_u32 v14, v12, 2, 1"); e("v_lshl_add_u32 v13, v14, 3, v13")
        e("v_bfe_u32 v14, v12, 3, 1"); e("v_lshl_add_u32 v13, v14, 2, v13")
        e("v_mul_u32_u24 v13, 3840, v13"); e("v_mul_u32_u24 v10, 1280, v10"); e("v_add_u32 v13, v13, v10")
        e(f"v_lshl_add_u32 {dst}, v11, 4, v13")
    qpat("v7", "v1")
    e("v_add_u32 v15, 7, v1"); qpat("v8", "v15")
    e("v_cmp_eq_u32 vcc, 0, v1"); e("v_cndmask_b32 v9, v8, v6, vcc"); e("v_cndmask_b32 v8, v8, v5, vcc")
    def dmaQ(fs, pro, aonly):
        L = []
        if not pro:
            L += [f"s_cmp_lt_i32 s35, {16-fs}", "s_cselect_b32 s10, s38, 0", "s_cmp_lt_i32 s35, 16", "s_cselect_b32 s14, s39, 0",
                  "s_cmp_eq_u32 s22, 0", "s_cselect_b32 s46, s10, s14"]
        hb = (1-fs)*9
        L += [f"s_add_u32 s40, s30, s36", f"s_add_u32 m0, s40, {hb*1024}",
          f"buffer_load_dwordx4 v{5+(1-fs)}, s[8:11], s{(31,32)[fs]} offen lds"]
        if aonly:
            L += ["s_cmp_lg_u32 s22, 0", "s_cbranch_scc1 1f", "s_add_u32 m0, s36, 8192", "buffer_load_dwordx4 v8, s[44:47], s34 offen lds", "1:"]
            return L
        L += ["s_add_u32 s40, s30, s48", f"s_add_u32 m0, s40, {WRQ}",
          "buffer_load_dwordx4 v7, s[12:15], s33 offen lds",
          f"s_add_u32 s40, s40, {WRQ+7168}", f"s_add_u32 s41, s36, {(hb+8)*1024}", f"s_add_u32 s42, s34, {hb*10240}",
          "s_cmp_eq_u32 s22, 0", "s_cselect_b32 m0, s41, s40", "s_cselect_b32 s41, s42, s33",
          f"buffer_load_dwordx4 v{8+(1-fs)}, s[44:47], s41 offen lds",
          f"s_add_u32 s33, s33, {32*3840}",
          f"s_add_u32 s48, s48, {WBQ}", f"s_cmp_eq_u32 s48, {4*WBQ}", "s_cselect_b32 s48, 0, s48"]
        if fs == 0:
            L += ["s_add_u32 s32, s32, 128", "s_add_u32 s31, s31, 128", "s_add_u32 s34, s34, 128",
                  f"s_add_u32 s36, s36, {AQ}", f"s_cmp_eq_u32 s36, {3*AQ}", "s_cselect_b32 s36, 0, s36"]
        return L
    SQ = 116; CQ = 240; TQ = 248; ONQ = 28; SH = 232
    XB = 76800
    def lateQ():
        e("v_lshrrev_b32 v14, 1, v1"); e("v_lshl_add_u32 v14, v14, 12, v3"); e("v_add_u32 v14, 2048, v14")
        e("v_and_b32 v15, 1, v1"); e("v_lshl_add_u32 v10, v15, 11, v14"); e("v_xor_b32 v16, 1, v15"); e("v_lshl_add_u32 v11, v16, 11, v14")
        e("v_xor_b32 v12, 64, v10"); e("v_xor_b32 v13, 64, v11"); e("v_xor_b32 v14, 64, v3")
        e("v_lshrrev_b32 v16, 5, v2"); e("v_bfe_u32 v17, v2, 4, 1"); e("v_bfe_u32 v18, v2, 2, 2")
        e("v_lshl_add_u32 v18, v16, 4, v18"); e("v_lshl_add_u32 v18, v17, 2, v18"); e("v_mul_u32_u24 v18, 480, v18")
        e("v_and_b32 v17, 3, v2"); e("v_lshl_add_u32 v18, v17, 3, v18"); e("v_lshl_add_u32 v18, v15, 8, v18"); e(f"v_add_u32 v15, {WRQ}, v18")
        divc("v18", "v19", "v0", 30, 512); e("v_and_b32 v18, 15, v18")
        e("v_mul_u32_u24 v16, 480, v18"); e("v_lshl_add_u32 v16, v19, 4, v16"); e("v_lshlrev_b32 v27, 1, v16")
        e(f"v_add_u32 v16, {WRQ}, v16"); e(f"v_add_u32 v27, {XB}, v27")
        for i in range(8): e(f"v_mov_b32 v{CQ+i}, 0")
    def addrsQ(h, adv):
        if adv:
            if h == 0: e(f"s_add_u32 s37, s37, {AQ}"); e(f"s_cmp_eq_u32 s37, {3*AQ}"); e("s_cselect_b32 s37, 0, s37")
            e(f"s_add_u32 s49, s49, {WBQ}"); e(f"s_cmp_eq_u32 s49, {4*WBQ}"); e("s_cselect_b32 s49, 0, s49")
        e(f"v_add_u32 v22, s37, v{10+2*h}"); e(f"v_add_u32 v23, s37, v{11+2*h}"); e(f"v_add_u32 v24, s37, v{(3,14)[h]}")
        e("v_add_u32 v25, s49, v15"); e("v_add_u32 v21, s49, v16")
    def readsQ(na, nw):
        def f(b):
            L = []
            for i in range(na): L.append(f"ds_read_b128 v[{b+4*i}:{b+4*i+3}], v{22+i}")
            for j in range(nw):
                for h in range(2):
                    r = b+4*na+4*j+2*h
                    L.append(f"ds_read_b64_tr_b16 v[{r}:{r+1}], v25 offset:{32*j+3840*h}")
            c = b+4*(na+nw)
            L += [f"ds_read_b128 v[{c}:{c+3}], v21", f"ds_read_b128 v[{c+4}:{c+7}], v21 offset:7680"]
            return L
        return f
    def valuQ(na, nw, hs):
        def f(b): return cs_ops(b+4*(na+nw), CQ, TQ)
        return f
    e("s_cmp_eq_u32 s22, 1"); e("s_cbranch_scc1 G1_v2")
    e("s_cmp_eq_u32 s22, 2"); e("s_cbranch_scc1 G1_v3")
    e("s_and_b32 s25, s22, 1"); e("s_cmp_eq_u32 s25, 1"); e("s_cbranch_scc1 G1_v1")
    def qepi(nw, halo, hs, tg):
        RS = 8192 + 16*30*32
        if tg == "G1Q0":
            e("s_cmp_lg_u32 s22, 0"); e(f"s_cbranch_scc1 {tg}_npf")
            e("s_sub_u32 s40, s2, 128"); e("s_lshr_b32 s41, s40, 1")
            e("v_readlane_b32 s42, v234, s41"); e("v_readlane_b32 s43, v235, s41")
            e("s_bitcmp1_b32 s40, 0"); e("s_cselect_b32 s42, s43, s42"); e("s_add_u32 s42, s42, 1")
            e("s_lshl_b32 s40, s40, 2")
            e("v_mov_b32 v10, s42"); e("v_mov_b32 v11, 0"); e("s_mov_b64 exec, 1")
            e("buffer_store_dword v10, v11, s[64:67], s40 offen offset:1024 sc1")
            e("s_mov_b64 exec, -1")
            lab(f"{tg}_npf")
        statget(tg, 144, XB+RS)
        e("v_and_b32 v12, 15, v2"); e("v_lshrrev_b32 v13, 4, v2"); e("v_lshlrev_b32 v12, 5, v12")
        e("v_lshrrev_b32 v12, 2, v12"); e(f"v_add_u32 v12, {XB}, v12")
        e("v_lshl_add_u32 v14, v1, 7, v12"); e("v_xor_b32 v15, 1, v1"); e("v_lshl_add_u32 v15, v15, 7, v12")
        RS, CST = exchange(30, CQ, XB)
        MS = 200; CS = 160
        e(f"ds_read_b64 v[{MS}:{MS+1}], v14 offset:{RS+128}"); e(f"ds_read_b64 v[{MS+2}:{MS+3}], v15 offset:{RS+128}")
        if halo: e(f"ds_read_b64 v[{MS+4}:{MS+5}], v12 offset:{RS}")
        e("v_and_b32 v11, 1, v1"); e("v_lshlrev_b32 v14, 4, v13"); e("v_lshl_add_u32 v14, v11, 9, v14"); e(f"v_add_u32 v14, {XB}, v14")
        for f in range(nw): e(f"ds_read_b128 v[{CS+4*f}:{CS+4*f+3}], v14 offset:{CST+64*f}")
        e("v_and_b32 v10, 15, v2"); e("v_mul_u32_u24 v10, 520, v10"); e("v_lshrrev_b32 v11, 4, v2"); e("v_lshl_add_u32 v12, v11, 3, v10")
        e("v_and_b32 v11, 1, v1"); e("v_lshl_add_u32 v12, v11, 8, v12")
        e("v_mul_u32_u24 v11, 8320, v1"); e("v_add_u32 v10, v12, v11"); e("v_add_u32 v10, 8320, v10")
        e("v_xor_b32 v11, 1, v1"); e("v_mul_u32_u24 v11, 8320, v11"); e("v_add_u32 v11, v12, v11"); e("v_add_u32 v11, 8320, v11")
        e("s_waitcnt lgkmcnt(0)")
        def fix(g, si, wi):
            lnfix(g, CS+4*wi, MS+2*si)
            e(f"v_cvt_pk_bf16_f32 v{g}, v{g}, v{g+1}"); e(f"v_cvt_pk_bf16_f32 v{g+1}, v{g+2}, v{g+3}")
        p = 0
        for wi in range(nw):
            for mb in range(2):
                g = ACC+4*p; p += 1
                fix(g, mb, wi)
                e(f"ds_write_b64 v{10+mb}, v[{g}:{g+1}] offset:{wi*32}")
        for wi in halo:
            g = ACC+4*p; p += 1
            fix(g, 2, wi)
            e(f"ds_write_b64 v12, v[{g}:{g+1}] offset:{wi*32}")
        e("s_branch G1_att")
    mainloop("G1Q0", dmaQ, 3, addrsQ, readsQ(2,8), 2, 8, [(mb,wi) for wi in range(8) for mb in range(2)], 128, valuQ(2,8,False), lateQ, [], 13, True); qepi(8, [], False, "G1Q0")
    lab("G1_v1")
    mainloop("G1Q1", dmaQ, 3, addrsQ, readsQ(2,7), 2, 7, [(mb,wi) for wi in range(7) for mb in range(2)], 128, valuQ(2,7,False), lateQ, [], 13, True); qepi(7, [], False, "G1Q1")
    lab("G1_v2")
    mainloop("G1Q2", dmaQ, 3, addrsQ, readsQ(3,7), 3, 7, [(mb,wi) for wi in range(7) for mb in range(2)]+[(2,wi) for wi in range(7)], 128, valuQ(3,7,False), lateQ, [], 13); qepi(7, list(range(7)), False, "G1Q2")
    lab("G1_v3")
    mainloop("G1Q3", dmaQ, 3, addrsQ, readsQ(3,8), 3, 8, [(mb,wi) for wi in range(8) for mb in range(2)]+[(2,wi) for wi in (5,6,7)], 128, valuQ(3,8,True), lateQ, [], 13); qepi(8, [5,6,7], True, "G1Q3")
    lab("G1_att")
    srd(12, 18, 19, AP_SZ, AP_OFF)
    e("s_and_b32 s24, s22, 3"); e("s_lshr_b32 s25, s22, 2")
    e("s_lshl_b32 s26, s25, 6"); e("v_add_u32 v3, s26, v2")
    e("s_lshl_b32 s27, s21, 7"); e("v_add_u32 v9, s27, v3")
    e("s_mul_i32 s26, s24, 40"); e("s_add_u32 s26, s26, 16*520")
    e("v_mul_u32_u24 v4, 520, v3"); e("v_add_u32 v4, s26, v4")
    e("v_subrev_u32 v5, 4160, v4")
    e("s_waitcnt lgkmcnt(0)"); e("s_barrier")
    Q=10; K=20; L=100; V=140
    for i in range(5): e(f"ds_read_b64 v[{Q+2*i}:{Q+2*i+1}], v4 offset:{8*i}")
    def rowaddr(w):
        if w == 0: return "v4", 0
        if w <= 4: return "v5", 4160-1040*w
        return "v6", 8320-1040*w
    e("v_subrev_u32 v6, 8320, v4")
    for w in range(8):
        a,o = rowaddr(w)
        for i in range(5): e(f"ds_read_b64 v[{K+10*w+2*i}:{K+10*w+2*i+1}], {a} offset:{o+160+8*i}")
    e("s_mov_b32 s20, 0x3e64f92e"); e("s_mov_b32 s23, 0xce6e0000")
    for w in range(8): e(f"v_mov_b32 v{L+w}, 0")
    e("s_waitcnt lgkmcnt(0)")
    for w in range(8):
        a,o = rowaddr(w)
        for i in range(5): e(f"ds_read_b64 v[{V+10*w+2*i}:{V+10*w+2*i+1}], {a} offset:{o+320+8*i}")
    for i in range(10):
        for w in range(8): e(f"v_dot2_f32_bf16 v{L+w}, v{Q+i}, v{K+10*w+i}, v{L+w}")
    e("v_mov_b32 v7, s23")
    e("s_nop 1")
    for w in range(8):
        bf16r(f"v{L+w}", f"v{L+w}"); e(f"v_mul_f32 v{L+w}, s20, v{L+w}"); bf16r(f"v{L+w}", f"v{L+w}")
        if w:
            e(f"v_cmp_le_u32 vcc, {2*w}, v9"); e("s_nop 1")
            e(f"v_cndmask_b32 v{L+w}, v7, v{L+w}, vcc")
    e(f"v_max_f32 v7, v{L}, v{L+1}")
    for w in range(2,8): e(f"v_max_f32 v7, v7, v{L+w}")
    e("s_mov_b32 s23, 0x3fb8aa3b")
    e("v_mov_b32 v8, 0")
    for w in range(8):
        e(f"v_sub_f32 v{L+w}, v{L+w}, v7"); e(f"v_mul_f32 v{L+w}, s23, v{L+w}"); e(f"v_exp_f32 v{L+w}, v{L+w}")
    for w in range(8): e(f"v_add_f32 v8, v8, v{L+w}")
    e("v_rcp_f32 v8, v8"); e("s_nop 0")
    for w in range(8):
        e(f"v_mul_f32 v{L+w}, v{L+w}, v8"); bf16r(f"v{L+w}", f"v{L+w}")
    e("s_waitcnt lgkmcnt(0)")
    O=20
    for d in range(20): e(f"v_mov_b32 v{O+d}, 0")
    for w in range(8):
        for i in range(10):
            e(f"v_lshlrev_b32 v7, 16, v{V+10*w+i}"); e(f"v_fmac_f32 v{O+2*i}, v{L+w}, v7")
            e(f"v_and_b32 v8, 0xffff0000, v{V+10*w+i}"); e(f"v_fmac_f32 v{O+2*i+1}, v{L+w}, v8")
    for i in range(10): e(f"v_cvt_pk_bf16_f32 v{Q+i}, v{O+2*i}, v{O+2*i+1}")
    e("v_lshrrev_b32 v4, 4, v9"); e("v_mul_u32_u24 v4, 69632, v4"); e("v_and_b32 v5, 15, v9"); e("v_lshl_add_u32 v4, v5, 4, v4")
    e("s_mul_i32 s26, s3, 80"); e("s_mul_i32 s27, s24, 20"); e("s_add_u32 s26, s26, s27")
    for p in range(5):
        e("s_lshr_b32 s27, s26, 3"); e("s_lshl_b32 s27, s27, 8"); e("s_bfe_u32 s28, s26, 0x10002"); e("s_lshl_b32 s28, s28, 3"); e("s_add_u32 s27, s27, s28")
        e(f"buffer_store_dwordx2 v[{Q+2*p}:{Q+2*p+1}], v4, s[12:15], s27 offen"+" sc1")
        e("s_add_u32 s26, s26, 4")
    lab("G1_sync")
    phase2()
    lab("G1_done"); e("s_endpgm")
    kdesc("g1_kernel", 256)

def p2_wdma():
    srd(56, 18, 19, W2_SZ, W2_OFF)
    e("s_lshr_b32 s60, s2, 3"); e("s_and_b32 s60, s60, 7")
    e("s_lshl_b32 s61, s22, 3"); e("s_add_u32 s61, s61, 4"); e("s_mul_i32 s63, s22, 10"); e("s_cmp_lt_u32 s22, 2"); e("s_cselect_b32 s61, s63, s61")
    e("s_add_u32 s61, s61, 3")
    e("s_mul_i32 s60, s60, 68*5120"); e("s_mul_i32 s61, s61, 5120"); e("s_add_u32 s60, s60, s61")
    e("s_mul_i32 s61, s22, 20480")
    for st in range(4):
        for q in range(5):
            e("s_mov_b32 m0, s61"); e("s_add_u32 s61, s61, 1024")
            e(f"buffer_load_dwordx4 v4, s[56:59], s60 offen lds")
            e("s_add_u32 s60, s60, 1024")
def phase2():
    WB = 20480
    e("s_load_dwordx2 s[16:17], s[0:1], 0")
    e("s_load_dwordx2 s[40:41], s[0:1], 56")
    e("s_and_b32 s3, s2, 7"); e("s_lshr_b32 s20, s2, 3")
    e("s_lshr_b32 s21, s20, 3"); e("s_lshl_b32 s49, s3, 2"); e("s_add_u32 s21, s21, s49")
    e("s_and_b32 s20, s20, 7")
    e("v_lshrrev_b32 v1, 6, v0"); e("v_and_b32 v2, 63, v0")
    e("v_lshlrev_b32 v4, 4, v2")
    e("v_lshlrev_b32 v228, 3, v2")
    e("buffer_load_dwordx2 v[226:227], v228, s[64:67], 0 offen offset:1024 sc1")
    rt(3)
    e("s_waitcnt vmcnt(0)"); e("s_barrier")
    rt(4)
    e("s_cmp_lg_u32 s22, 0"); e("s_cbranch_scc1 G2_noat")
    e("v_mov_b32 v5, s76"); e("v_mov_b32 v6, 0")
    e("s_mov_b64 exec, 1")
    e("buffer_store_dword v5, v6, s[64:67], s69 offen sc1")
    e("s_mov_b64 exec, -1")
    lab("G2_noat")
    e("s_mov_b32 s49, 0")
    lab("G2_pk")
    e("v_cmp_eq_u32 vcc, v226, v234"); e("v_cmp_eq_u32 s[42:43], v227, v235"); e("s_or_b64 vcc, vcc, s[42:43]")
    e("s_cmp_eq_u64 vcc, 0"); e("s_cbranch_scc1 G2_pko")
    e("s_sleep 2")
    e("buffer_load_dwordx2 v[226:227], v228, s[64:67], 0 offen offset:1024 sc1")
    e("s_waitcnt vmcnt(0)")
    e("s_add_u32 s49, s49, 1"); e("s_cmp_lt_u32 s49, 0x4000"); e("s_cbranch_scc1 G2_pk")
    lab("G2_pko")
    srd(8, 18, 19, AP_SZ, AP_OFF); srd(12, 18, 19, W2_SZ, W2_OFF)
    e("s_mov_b32 s42, s10"); e("s_mov_b32 s43, s14")
    e("s_lshl_b32 s29, s22, 3"); e("s_add_u32 s29, s29, 4"); e("s_mul_i32 s30, s22, 10"); e("s_cmp_lt_u32 s22, 2"); e("s_cselect_b32 s29, s30, s29")
    e("s_cselect_b32 s31, 12, 8"); e("s_cselect_b32 s30, 7, 5")
    e("s_mul_i32 s32, s21, 4*69632"); e("s_lshl_b32 s36, s29, 10"); e("s_add_u32 s32, s32, s36")
    e("s_mul_i32 s33, s20, 68*5120"); e("s_mul_i32 s36, s29, 5120"); e("s_add_u32 s33, s33, s36")
    e("s_add_u32 s44, s32, 69632"); e("s_add_u32 s45, s44, 69632"); e("s_add_u32 s46, s45, 69632")
    e("s_add_u32 s47, s33, 4096")
    e("s_waitcnt lgkmcnt(0)")
    srd(24, 16, 17, X_SZ)
    e("v_and_b32 v11, 15, v2"); e("v_lshrrev_b32 v12, 4, v2")
    e("s_lshl_b32 s36, s21, 6"); e("s_and_b32 s37, s22, 3"); e("s_lshl_b32 s37, s37, 4"); e("s_add_u32 s36, s36, s37")
    e("v_add_u32 v11, s36, v11"); e("v_mul_u32_u24 v11, 1280, v11")
    e("s_lshr_b32 s36, s22, 2"); e("s_mul_i32 s36, s36, 48")
    e("s_mul_i32 s37, s20, 80"); e("s_add_u32 s37, s37, s36"); e("v_lshl_add_u32 v12, v12, 2, s37"); e("v_lshl_add_u32 v11, v12, 1, v11")
    for nb in range(3): e(f"buffer_load_dwordx2 v[{14+2*nb}:{15+2*nb}], v11, s[24:27], 0 offen offset:{32*nb}")
    ACC=32; FR=112
    for i in range(80): e(f"v_mov_b32 v{ACC+i}, 0")
    def ldW(fs):
        b = FR+36*fs
        for q in range(4): e(f"buffer_load_dwordx4 v[{b+16+4*q}:{b+16+4*q+3}], v4, s[12:15], s33 offen offset:{1024*q}")
        e(f"buffer_load_dwordx4 v[{b+32}:{b+35}], v4, s[12:15], s47 offen")
        e("s_add_u32 s33, s33, 5120"); e("s_add_u32 s47, s47, 5120")
    def ldA(fs):
        b = FR+36*fs
        for q in range(4): e(f"buffer_load_dwordx4 v[{b+4*q}:{b+4*q+3}], v4, s[8:11], s{(32,44,45,46)[q]} offen")
        for s_ in (32,44,45,46): e(f"s_add_u32 s{s_}, s{s_}, 1024")
    for fs in range(3): ldW(fs)
    p2_wdma()
    e("s_add_u32 s33, s33, 20480")
    e("s_add_u32 s47, s33, 4096")
    e("v_mul_u32_u24 v29, 20480, v1"); e("v_add_u32 v10, v29, v4")
    e("s_cmp_lg_u32 s22, 0"); e("s_cbranch_scc1 G2_go")
    e("s_lshl_b32 s48, s3, 7"); e("v_and_b32 v6, 31, v2"); e("v_lshlrev_b32 v6, 2, v6"); e("s_mov_b32 s49, 0")
    lab("G2_spin")
    e("buffer_load_dword v5, v6, s[64:67], s48 offen sc1")
    e("s_waitcnt vmcnt(0)")
    e("v_cmp_eq_u32 vcc, v5, v232"); e("s_cmp_eq_u64 vcc, 0"); e("s_cbranch_scc1 G2_go")
    e("s_sleep 2")
    e("s_add_u32 s49, s49, 1"); e("s_cmp_lt_u32 s49, 0x4000"); e("s_cbranch_scc1 G2_spin")
    lab("G2_go")
    e("s_barrier")
    rt(5)
    def run(T):
        q = []
        def issue(tag, n):
            for _ in range(n): q.append(tag)
        for st in range(3): ldA(st); issue(("A",st),4)
        first = True
        for st in range(T):
            n = st+3
            if n < T:
                ldA(n%4); issue(("A",n),4)
                if n >= 7: ldW(n%4); issue(("A",n),5)
            last = max(i for i,t in enumerate(q) if t == ("A",st))
            cntv = len(q)-1-last
            e(f"s_waitcnt vmcnt({cntv}) lgkmcnt(0)")
            b = FR+36*(st%4)
            R = []
            if 3 <= st+1 < 7:
                bn = FR+36*((st+1)%4)
                R = [f"ds_read_b128 v[{bn+16+4*k}:{bn+16+4*k+3}], v10 offset:{(st+1-3)*5120+k*1024}" for k in range(5)]
            for nb in range(5):
                for mb in range(4):
                    a_ = ACC+(nb*4+mb)*4; w = b+16+nb*4; x = b+mb*4
                    e(f"v_mfma_f32_16x16x32_bf16 v[{a_}:{a_+3}], v[{w}:{w+3}], v[{x}:{x+3}], v[{a_}:{a_+3}]")
                    if R: e(R.pop(0))
    e("s_cmp_ge_u32 s22, 2"); e("s_cbranch_scc1 G2_h")
    run(10); e("s_branch G2_red")
    lab("G2_h")
    run(8)
    lab("G2_red")
    e("s_waitcnt vmcnt(0)"); e("s_nop 7"); rt(6)
    e("v_mul_u32_u24 v29, 20480, v1"); e("v_add_u32 v10, v29, v4")
    for i in range(20): e(f"ds_write_b128 v10, v[{ACC+4*i}:{ACC+4*i+3}] offset:{i*1024}")
    srd(12, 40, 41, X_SZ)
    e("s_and_b32 s37, s22, 3"); e("s_lshl_b32 s37, s37, 10"); e("s_lshr_b32 s36, s22, 2"); e("s_mul_i32 s36, s36, 12288"); e("s_add_u32 s37, s37, s36")
    e("v_add_u32 v10, s37, v4"); e(f"v_add_u32 v12, {3*WB}, v10"); e(f"v_add_u32 v13, {6*WB}, v10")
    e("s_waitcnt lgkmcnt(0)"); e("s_barrier")
    def rd(nb):
        r = 32+32*nb
        for k in range(8): e(f"ds_read_b128 v[{r+4*k}:{r+4*k+3}], v{(10,12,13)[k//3]} offset:{nb*4096+(k%3)*WB}")
    def fin(nb):
        r = 32+32*nb
        e(f"v_lshlrev_b32 v6, 16, v{14+2*nb}"); e(f"v_and_b32 v7, 0xffff0000, v{14+2*nb}")
        e(f"v_lshlrev_b32 v8, 16, v{15+2*nb}"); e(f"v_and_b32 v9, 0xffff0000, v{15+2*nb}")
        for j in range(4):
            e(f"v_add_f32 v{r+j}, v{r+j}, v{r+4+j}")
            e(f"v_add_f32 v{r+8+j}, v{r+8+j}, v{r+12+j}"); e(f"v_add_f32 v{r+16+j}, v{r+16+j}, v{r+20+j}"); e(f"v_add_f32 v{r+24+j}, v{r+24+j}, v{r+28+j}")
            e(f"v_add_f32 v{r+8+j}, v{r+8+j}, v{r+16+j}"); e(f"v_add_f32 v{r+8+j}, v{r+8+j}, v{r+24+j}")
            bf16r(f"v{r+8+j}", f"v{r+8+j}"); bf16r(f"v{r+j}", f"v{r+j}")
            e(f"v_add_f32 v{r+j}, v{6+j}, v{r+j}"); bf16r(f"v{r+j}", f"v{r+j}")
            e(f"v_add_f32 v{r+j}, v{r+j}, v{r+8+j}")
        e(f"v_cvt_pk_bf16_f32 v{r}, v{r}, v{r+1}"); e(f"v_cvt_pk_bf16_f32 v{r+1}, v{r+2}, v{r+3}")
        e(f"buffer_store_dwordx2 v[{r}:{r+1}], v11, s[12:15], 0 offen offset:{32*nb}")
    rd(0); rd(1)
    e("s_waitcnt lgkmcnt(8)"); fin(0)
    e("s_cmp_ge_u32 s22, 4"); e("s_cbranch_scc1 G2_two")
    rd(2); e("s_waitcnt lgkmcnt(8)"); fin(1); e("s_waitcnt lgkmcnt(0)"); fin(2); e("s_branch G2_end")
    lab("G2_two")
    e("s_waitcnt lgkmcnt(0)"); fin(1)
    lab("G2_end")
    if 'rt' in X:
        e("s_waitcnt vmcnt(0)"); rt(7); rtstore(0, 8, 18, 240)

HEAD = open("parallel_sum__sliding_local_dilated__glu_gated_swiglu__prompt.s.ref").read().split("; @launch")[0]
gen_g1()
txt = HEAD + """; @launch kernel=g1_kernel grid=(256,1,1) block=(512,1,1) lds=163840
.amdgcn_target "amdgcn-amd-amdhsa--gfx950"
.text
""" + "\n".join(OUT) + '\n.section .rodata,"a"\n' + "\n".join(DESCS) + "\n"
open(os.environ.get("GO","k.s"), "w").write(txt)
```
